```python
import torch

def _softmax(x, axis=-1):
    return torch.softmax(x, dim=axis)
def _gelu(x):
    return torch.nn.functional.gelu(x, approximate="tanh")
def _silu(x):
    return torch.nn.functional.silu(x)
def _sigmoid(x):
    return torch.sigmoid(x)
def _layernorm(x, axis=-1, eps=1e-5):
    m = x.mean(dim=axis, keepdim=True)
    v = x.var(dim=axis, keepdim=True, unbiased=False)
    return (x - m) / torch.sqrt(v + eps)
def _scatter_add(tgt, idx, src, axis=0):
    return tgt.clone().index_add_(axis, idx, src)
def _segment_sum(src, seg, n):
    out = torch.zeros((n,) + src.shape[1:], dtype=src.dtype)
    return out.index_add_(0, seg, src)
def _pad(x, pw):
    flat = tuple(v for pair in reversed(pw) for v in pair)
    return torch.nn.functional.pad(x, flat)

kernel_name = 'concat_heads__grouped_kv_mqa__ssm_conv_s5__prompt'

def setup_inputs():

    _w = (lambda a: (lambda t: t.to(torch.bfloat16) if t.is_floating_point() else t)(torch.as_tensor(a)))
    def _A_setup():
        B, S, D, H = 1, 2048, 640, 32
        Dh = D // H
        return {
            "x": _w((lambda *s: torch.randn(*s, dtype=torch.bfloat16) * 0.05)(B, S, D)),
            "wq": _w((lambda *s: torch.randn(*s, dtype=torch.bfloat16) * 0.8)(D, H * Dh)),
            "wk": _w((lambda *s: torch.randn(*s, dtype=torch.bfloat16) * 0.8)(D, Dh)),
            "wv": _w((lambda *s: torch.randn(*s, dtype=torch.bfloat16) * 0.05)(D, Dh)),
            "wo": _w((lambda *s: torch.randn(*s, dtype=torch.bfloat16) * 0.05)(H * Dh, D)),
        }
    _A_in = _A_setup()

    def _B_setup():
        B, S, D = 1, 2048, 640
        P = D
        Lambda_re = -0.5 * (lambda _x: torch.exp(torch.as_tensor(_x)))((lambda *s: torch.randn(*s, dtype=torch.bfloat16) * 0.2)(P))
        Lambda_im = (lambda *s: torch.randn(*s, dtype=torch.bfloat16) * 0.4)(P) * 1.0
        B_re = (lambda *s: torch.randn(*s, dtype=torch.bfloat16) * 0.2)(P, D) * (D ** -0.5)
        B_im = (lambda *s: torch.randn(*s, dtype=torch.bfloat16) * 0.2)(P, D) * (D ** -0.5)
        C_re = (lambda *s: torch.randn(*s, dtype=torch.bfloat16) * 0.2)(D, P) * (P ** -0.5)
        C_im = (lambda *s: torch.randn(*s, dtype=torch.bfloat16) * 0.2)(D, P) * (P ** -0.5)
        log_dt = (lambda *s: torch.randn(*s, dtype=torch.bfloat16) * 0.2)(P) * 0.3 - 2.0
        Dskip = (lambda *s: torch.randn(*s, dtype=torch.bfloat16) * 0.05)(D)
        return {
            "x": _w((lambda *s: torch.randn(*s, dtype=torch.bfloat16) * 0.05)(B, S, D)),
            "Lambda_re": _w(Lambda_re),
            "Lambda_im": _w(Lambda_im),
            "B_re": _w(B_re),
            "B_im": _w(B_im),
            "C_re": _w(C_re),
            "C_im": _w(C_im),
            "log_dt": _w(log_dt),
            "Dskip": _w(Dskip),
        }
    _B_in = _B_setup()

    return {
        "A_x": _A_in["x"],
        "A_wq": _A_in["wq"],
        "A_wk": _A_in["wk"],
        "A_wv": _A_in["wv"],
        "A_wo": _A_in["wo"],
        "B_x": _B_in["x"],
        "B_Lambda_re": _B_in["Lambda_re"],
        "B_Lambda_im": _B_in["Lambda_im"],
        "B_B_re": _B_in["B_re"],
        "B_B_im": _B_in["B_im"],
        "B_C_re": _B_in["C_re"],
        "B_C_im": _B_in["C_im"],
        "B_log_dt": _B_in["log_dt"],
        "B_Dskip": _B_in["Dskip"],
    }

def reference(A_x, A_wq, A_wk, A_wv, A_wo, B_x, B_Lambda_re, B_Lambda_im, B_B_re, B_B_im, B_C_re, B_C_im, B_log_dt, B_Dskip):
    def _A_ref(x, wq, wk, wv, wo):
        B, S, D = x.shape
        H = 32
        Dh = D // H
        q = (lambda x, *d: x.permute(*d))((x @ wq).reshape(B, S, H, Dh), 0, 2, 1, 3)
        k = x @ wk
        v = x @ wv
        scores = torch.einsum("bhqd,bkd->bhqk", q, k) * (Dh ** -0.5)
        p = _softmax(scores, axis=-1)
        o = torch.einsum("bhqk,bkd->bhqd", p, v)
        return (lambda x, *d: x.permute(*d))(o, 0, 2, 1, 3).reshape(B, S, H * Dh) @ wo

    def _B_ref(x, Lambda_re, Lambda_im, B_re, B_im, C_re, C_im, log_dt, Dskip):
        Bsz, L, H = x.shape
        Lam = Lambda_re + 1j * Lambda_im
        Bmat = B_re + 1j * B_im
        Cmat = C_re + 1j * C_im
        dt = torch.exp(log_dt)
        Lam_bar = torch.exp(dt * Lam)
        B_bar = ((Lam_bar - 1.0) / Lam)[:, None] * Bmat
        Bu = torch.einsum("bld,pd->blp", x + 0j, B_bar)
        h = torch.zeros_like(Bu[:, 0, :])
        hs = []
        for t in range(L):
            h = Lam_bar[None, :] * h + Bu[:, t, :]
            hs.append(h)
        hseq = torch.stack(hs, 1)
        y = 2.0 * torch.einsum("blp,dp->bld", hseq, Cmat).real + x * Dskip[None, None, :]
        return y

    a = _A_ref(A_x, A_wq, A_wk, A_wv, A_wo)
    b = _B_ref(B_x, B_Lambda_re, B_Lambda_im, B_B_re, B_B_im, B_C_re, B_C_im, B_log_dt, B_Dskip)
    return torch.concatenate([a, b], axis=-1)
```

```python
import re


def vr(a, n=1):
    return f"v{a}" if n == 1 else f"v[{a}:{a + n - 1}]"


def sr(a, n=1):
    return f"s{a}" if n == 1 else f"s[{a}:{a + n - 1}]"


_REG = re.compile(r"^-?\|?(?:abs\()?([vsa])(?:(\d+)|\[(\d+):(\d+)\])\)?\|?$")
TRANS = ("v_exp_", "v_log_", "v_rcp_", "v_rsq_", "v_sqrt_", "v_sin_", "v_cos_")


def regs_of(tok):
    tok = tok.strip()
    if tok == "vcc":
        return {("s", "vcc")}
    if tok in ("exec", "exec_lo", "exec_hi"):
        return {("s", "exec")}
    if tok == "m0":
        return {("s", "m0")}
    m = _REG.match(tok)
    if not m:
        return set()
    k = m.group(1)
    lo = int(m.group(2) if m.group(2) is not None else m.group(3))
    hi = int(m.group(2) if m.group(2) is not None else m.group(4))
    return {(k, i) for i in range(lo, hi + 1)}


class Ins:
    def __init__(self, text):
        self.text = text
        body = text.split(";")[0].strip()
        parts = body.split(None, 1)
        self.op = op = parts[0]
        rest = parts[1] if len(parts) > 1 else ""
        ops = [o.strip() for o in re.split(r",(?![^\[]*\])", rest)] if rest else []
        mods = ""
        if ops:
            last = ops[-1].split(None, 1)
            ops[-1] = last[0]
            mods = last[1] if len(last) > 1 else ""
        self.ops, self.mods = ops, mods
        R = [regs_of(o) for o in ops]
        allr = lambda xs: set().union(*xs) if xs else set()
        self.w, self.r = set(), set()
        self.a = self.b = self.c = set()
        self.data = set()
        self.passes = 0
        self.states = 1
        if op.startswith("v_mfma") or op.startswith("v_smfmac"):
            self.cls = "mfma"
            self.passes = 8 if "32x32" in op else 4
            self.w = R[0]
            if op.startswith("v_smfmac"):
                self.a, self.b, self.c = R[1], R[2] | R[3], R[0]
            else:
                self.a, self.b, self.c = R[1], R[2], R[3]
            self.r = self.a | self.b | self.c
        elif op.startswith("v_"):
            self.cls = "valu"
            if "permlane" in op and "swap" in op:
                self.w = self.r = R[0] | R[1]
            elif op.startswith(("v_add_co", "v_sub_co", "v_addc_co")):
                self.w, self.r = R[0] | R[1], allr(R[2:])
            else:
                self.w, self.r = R[0], allr(R[1:])
                if op.startswith("v_fmac") or "dpp" in op:
                    self.r = self.r | R[0]
        elif op.startswith(("buffer_", "global_")):
            self.cls = "vmem"
            lds = " lds" in " " + mods
            if "load" in op and not lds:
                self.w, self.r = R[0], allr(R[1:])
            else:
                self.r = allr(R)
                if lds:
                    self.r = self.r | {("s", "m0")}
                elif op.endswith(("x3", "x4")):
                    self.data = R[0] if op.startswith("buffer_") else R[1]
                if "atomic" in op and "sc0" in mods:
                    self.w = R[0]
        elif op.startswith("ds_"):
            self.cls = "ds"
            if "read" in op or "rtn" in op:
                self.w, self.r = R[0], allr(R[1:])
            else:
                self.r = allr(R)
        else:
            self.cls = "salu"
            if op == "s_nop":
                self.states = int(ops[0], 0) + 1
            elif op.startswith(("s_cmp", "s_cbranch", "s_branch", "s_waitcnt", "s_barrier", "s_sleep", "s_setprio", "s_endpgm")):
                self.r = allr(R)
            elif R:
                self.w, self.r = R[0], allr(R[1:])
        self.trans = op.startswith(TRANS)
        self.dpp = "dpp" in op
        self.perm = "permlane" in op
        self.rdlane = op.startswith(("v_readlane", "v_readfirstlane"))


def vg(s):
    return {x for x in s if x[0] in "va"}


def sg(s):
    return {x for x in s if x[0] == "s"}


def need(p, c):
    n = 0
    if p.cls == "valu":
        pw = vg(p.w)
        if c.cls == "mfma" and pw & c.r:
            n = max(n, 2)
        if c.cls == "valu":
            if p.trans and not c.trans and pw & c.r:
                n = max(n, 1)
            if (c.dpp or c.perm) and pw & c.r:
                n = max(n, 2)
            if c.rdlane and pw & c.r:
                n = max(n, 1)
            if sg(p.w) & c.r:
                n = max(n, 4 if c.op.startswith(("v_readlane", "v_writelane")) else 2)
        if c.cls == "vmem" and sg(p.w) & c.r:
            n = max(n, 5)
        if c.cls == "salu" and sg(p.w) & c.r:
            n = max(n, 1)
    if p.cls == "mfma":
        far = 12 if p.passes == 8 else 8
        if c.cls == "mfma":
            if p.w & (c.a | c.b):
                n = max(n, far)
            if p.w & c.c and not (p.w == c.c and p.passes == c.passes):
                n = max(n, far - 2)
            if p.w & c.w and p.w != c.w:
                n = max(n, far - 2)
        elif c.cls in ("valu", "vmem", "ds") and p.w & (c.r | c.w):
            n = max(n, far)
        if c.cls == "valu" and p.c & c.w:
            n = max(n, 7 if p.passes == 8 else 3)
    if p.cls == "vmem" and p.data and p.data & c.w:
        n = max(n, 2)
    if p.cls == "salu" and ("s", "m0") in p.w and c.cls == "vmem" and ("s", "m0") in c.r:
        n = max(n, 1)
    return n


def shortfall(hist, c):
    dist, miss, why = 0, 0, None
    for p in reversed(hist):
        n = need(p, c)
        if n - dist > miss:
            miss, why = n - dist, p
        dist += p.states
        if dist > 20:
            break
    return miss, why


class Asm:
    def __init__(self):
        self.items = []

    def __call__(self, text):
        for line in text.strip().split("\n"):
            line = line.strip()
            if not line:
                continue
            if line.startswith(";"):
                self.items.append(("c", line))
            elif line.endswith(":"):
                self.items.append(("l", line[:-1]))
            elif line.startswith("."):
                self.items.append(("d", line))
            else:
                self.items.append(("i", Ins(line)))

    def finish(self):
        out, hist, pads = [], [], 0
        for kind, x in self.items:
            if kind == "i":
                miss, _ = shortfall(hist, x)
                if miss:
                    nop = Ins(f"s_nop {miss - 1}")
                    out.append(("i", nop))
                    hist.append(nop)
                    pads += 1
                hist.append(x)
                if x.op in ("s_branch", "s_endpgm"):
                    hist = []
            out.append((kind, x))
        labels = {x: i for i, (k, x) in enumerate(out) if k == "l"}
        for i, (k, x) in enumerate(out):
            if k == "i" and x.op.startswith(("s_branch", "s_cbranch")):
                h = [y for kk, y in out[max(0, i - 40): i + 1] if kk == "i"]
                n = 0
                for kk, y in out[labels[x.ops[0]]:]:
                    if kk != "i":
                        continue
                    miss, why = shortfall(h, y)
                    if miss:
                        raise RuntimeError(f"hazard across branch {x.text}: {why.text} -> {y.text} short by {miss}")
                    h.append(y)
                    n += y.states
                    if n > 20 or y.op in ("s_branch", "s_endpgm"):
                        break
        self.pads = pads
        lines = []
        for k, x in out:
            if k == "i":
                lines.append("    " + x.text)
            elif k == "l":
                lines.append(x + ":")
            elif k == "c":
                lines.append("    " + x)
            else:
                lines.append(x)
        return "\n".join(lines) + "\n"


class VMQ:
    def __init__(self):
        self.q = []

    def push(self, tag, n=1):
        self.q += [tag] * n

    def cover(self, tag):
        idx = [i for i, t in enumerate(self.q) if t == tag]
        if not idx:
            return None
        n = len(self.q) - 1 - idx[-1]
        self.q = self.q[idx[-1] + 1:]
        assert n <= 63
        return n

    def clear(self):
        self.q = []
```

```python
import math
import struct
import sys

sys.path.insert(0, "gen")
from asmlib import Asm, VMQ, vr, sr

NAME = "concat_heads__grouped_kv_mqa__ssm_conv_s5__prompt"

WS_KVF, WS_HF, WS_OF = 0x0000, 0x2000, 0x3000
WS_E, E_BYTES = 0x10000, 22 * 640 * 8
WS_KV, KV_BYTES = 0x40000, 32 * 5376
WS_O = 0x100000
WS_H, WS_END = 0x400000, 0x900000
WS_DIAG = 0x1000000
X_BYTES, W_BYTES, OUT_BYTES = 2048 * 1280, 640 * 1280, 2048 * 5120
FAR = 0x7FFF0000
SPIN = 40000

P_AX, P_WQ, P_WK, P_WV, P_WO, P_BX, P_LRE, P_LIM = 4, 6, 8, 10, 12, 14, 16, 18
P_BRE, P_BIM, P_CRE, P_CIM, P_LDT, P_DSK, P_OUT, P_DBG, P_WS = 20, 22, 24, 26, 28, 30, 32, 34, 36
S_W, S_T = 38, 39
RA, RB, RC, RW, RD = 40, 44, 48, 52, 56
S_X, S_S = 60, 61

LANE, SW0, SW1, L16 = 255, 254, 253, 248
FR = [249, 250, 251, 252]

LOG2E = 1.4426950408889634
QSCALE = 20 ** -0.5 * LOG2E
SAFE_BOUND = 64.0


def fbits(x):
    return "0x%08x" % struct.unpack("<I", struct.pack("<f", x))[0]


class Gen:
    def __init__(self, diag=False, opts=None):
        self.a = Asm()
        self.diag = diag
        self.o = dict(opts or {})
        self.uid = 0

    def lab(self, base):
        self.uid += 1
        return f"L_{base}_{self.uid}"

    def srd(self, r, ptr, nbytes, add=0):
        a = self.a
        if add:
            a(f"s_add_u32 s{r}, s{ptr}, {add:#x}\ns_addc_u32 s{r+1}, s{ptr+1}, 0")
        else:
            a(f"s_mov_b32 s{r}, s{ptr}\ns_mov_b32 s{r+1}, s{ptr+1}")
        a(f"s_mov_b32 s{r+2}, {nbytes:#x}\ns_mov_b32 s{r+3}, 0x20000")

    def stamp(self, n):
        if self.diag:
            self.a(f"s_memtime s[78:79]\ns_waitcnt lgkmcnt(0)\ns_mov_b32 s{80+n}, s78")

    def dma(self, vaddr, srd, soff, off=0, sc1=False):
        o = f" offset:{off}" if off else ""
        self.a(f"buffer_load_dwordx4 v{vaddr}, {sr(srd,4)}, {soff} offen{o}{' sc1' if sc1 else ''} lds")

    def lanes(self):
        self.a(f"""
        v_lshrrev_b32 v1, 6, v0
        v_and_b32 v{LANE}, 63, v0
        s_and_b32 s{S_X}, s2, 7
        v_readfirstlane_b32 s{S_W}, v1
        s_bfe_u32 s{S_S}, s2, 0x50003
        v_lshrrev_b32 v1, 3, v{LANE}
        v_lshrrev_b32 v2, 4, v{LANE}
        v_and_b32 v3, 7, v{LANE}
        v_mul_u32_u24 v1, 1280, v1
        v_xor_b32 v3, v3, v2
        v_lshl_add_u32 v{SW0}, v3, 4, v1
        v_lshlrev_b32 v{L16}, 4, v{LANE}
        v_xor_b32 v{SW1}, 64, v{SW0}
        v_add_u32 v{SW1}, 9216, v{SW1}
        """)

    def frag_lanes(self):
        self.a(f"""
        v_and_b32 v1, 31, v{LANE}
        v_lshrrev_b32 v2, 5, v{LANE}
        v_bfe_u32 v3, v{LANE}, 1, 3
        v_xor_b32 v2, v2, v3
        v_lshlrev_b32 v1, 7, v1
        v_lshl_add_u32 v{FR[0]}, v2, 4, v1
        v_xor_b32 v{FR[1]}, 32, v{FR[0]}
        v_xor_b32 v{FR[2]}, 64, v{FR[0]}
        v_xor_b32 v{FR[3]}, 0x60, v{FR[0]}
        """)

    def tr_lanes(self, dst, stride):
        self.a(f"""
        v_lshrrev_b32 v1, 5, v{LANE}
        v_bfe_u32 v2, v{LANE}, 2, 2
        v_lshl_add_u32 v1, v1, 3, v2
        v_mul_u32_u24 v1, {stride}, v1
        v_and_b32 v2, 19, v{LANE}
        v_min_u32 v2, 4, v2
        v_lshl_add_u32 v{dst}, v2, 3, v1
        """)

    def w160_lanes(self, regs):
        for i, r in enumerate(regs):
            comp = 1024 * i if i < 4 else 0
            self.a(f"""
            v_add_u32 v1, {64*i}, v{LANE}
            v_mul_u32_u24 v2, 6554, v1
            v_lshrrev_b32 v2, 16, v2
            v_mul_u32_u24 v2, 1120, v2
            v_lshl_add_u32 v{r}, v1, 4, v2
            """)
            if comp:
                self.a(f"v_subrev_u32 v{r}, {comp}, v{r}")

    def poll(self, vaddr, srd, soff, vdata, width, check, sleep=0):
        l, d = self.lab("poll"), self.lab("polled")
        op = {1: "dword", 2: "dwordx2"}[width]
        self.a(f"""
        s_mov_b32 s{S_T}, {SPIN}
        {l}:
        buffer_load_{op} {vr(vdata,width)}, v{vaddr}, {sr(srd,4)}, {soff} offen sc1
        s_sub_u32 s{S_T}, s{S_T}, 1
        s_cbranch_scc1 {d}
        s_waitcnt vmcnt(0)
        """)
        check()
        self.a(f"s_cbranch_vccz {d}")
        if sleep:
            self.a(f"s_sleep {sleep}")
        self.a(f"s_branch {l}\n{d}:\ns_waitcnt vmcnt(0)")

    def poll_eq(self, srd, soff, value, sleep=0, va=1, vd=2):
        self.a(f"s_mov_b64 exec, 1\nv_mov_b32 v{va}, 0")
        self.poll(va, srd, soff, vd, 1, lambda: self.a(f"v_cmp_ne_u32 vcc, {value}, v{vd}"), sleep)
        self.a("s_mov_b64 exec, -1")

    def signal_add(self, srd, soff, va=1, vd=2):
        self.a(f"""
        s_mov_b64 exec, 1
        v_mov_b32 v{va}, 0
        v_mov_b32 v{vd}, 1
        buffer_atomic_add v{vd}, v{va}, {sr(srd,4)}, {soff} offen
        s_mov_b64 exec, -1
        """)

    def finish_wave(self):
        a = self.a
        if self.diag:
            self.stamp(18)
            self.srd(RA, P_WS, 1 << 20, WS_DIAG)
            a("s_mov_b64 exec, -1\nv_mov_b32 v1, 0")
            for n in range(20):
                a(f"v_writelane_b32 v1, s{80+n}, {n}")
            a(f"""
            s_lshl_b32 s{S_T}, s2, 2
            s_add_u32 s{S_T}, s{S_T}, s{S_W}
            s_lshl_b32 s{S_T}, s{S_T}, 8
            v_lshlrev_b32 v2, 2, v{LANE}
            buffer_store_dword v1, v2, {sr(RA,4)}, s{S_T} offen
            """)
        a("s_endpgm")

    def entry(self):
        a = self.a
        a(f"""
        s_cmp_ge_u32 s2, 512
        s_cbranch_scc1 L_exit
        s_load_dwordx16 s[4:19], s[0:1], 0
        s_load_dwordx16 s[20:35], s[0:1], 64
        s_load_dwordx2 s[36:37], s[0:1], 128
        """)
        if self.diag:
            a("s_memtime s[78:79]\ns_memrealtime s[76:77]")
            for n in range(1, 19):
                a(f"s_mov_b32 s{80+n}, 0")
        a("s_cmp_lt_u32 s2, 256\ns_cbranch_scc1 L_att")

    def after_kernarg(self):
        self.a("s_waitcnt lgkmcnt(0)")
        if self.diag:
            self.a("s_mov_b32 s80, s78\ns_mov_b32 s99, s76")

    def kv_job(self):
        a = self.a
        CH, RED = 6656, 69632
        S_KT, S_WH, S_N, S_B, S_XO, S_WO_, S_I = 62, 63, 64, 65, 66, 67, 68
        XF, WF, AX, AW = 16, 32, 48, 52
        a(f"""
        s_cmp_ge_u32 s{S_S}, 16
        s_cbranch_scc1 L_kv_skip
        s_setprio 3
        s_lshr_b32 s{S_KT}, s{S_S}, 1
        s_lshl_b32 s{S_T}, s{S_X}, 3
        s_add_u32 s{S_KT}, s{S_KT}, s{S_T}
        s_and_b32 s{S_WH}, s{S_S}, 1
        s_cselect_b32 s{RB}, s{P_WV}, s{P_WK}
        s_cselect_b32 s{RB+1}, s{P_WV+1}, s{P_WK+1}
        s_mov_b32 s{RB+2}, 25600
        s_mov_b32 s{RB+3}, 0x20000
        """)
        self.srd(RA, P_AX, X_BYTES)
        a(f"""
        s_cmp_lt_u32 s{S_W}, 2
        s_cselect_b32 s{S_N}, 3, 2
        s_cselect_b32 s{S_T}, 8, 4
        s_add_u32 s{S_T}, s{S_T}, s{S_W}
        s_mul_i32 s{S_B}, s{S_T}, {CH}
        s_mul_i32 s{S_WO_}, s{S_T}, 2560
        s_lshl_b32 s{S_T}, s{S_T}, 7
        s_mul_i32 s{S_XO}, s{S_KT}, {32*1280}
        s_add_u32 s{S_XO}, s{S_XO}, s{S_T}
        s_mov_b32 s{S_I}, s{S_N}
        s_mov_b32 s69, s{S_B}
        L_kv_issue:
        s_mov_b32 m0, s69
        s_add_u32 s{S_T}, s{S_XO}, {16*1280-2048}
        """)
        self.dma(SW0, RA, f"s{S_XO}")
        self.dma(SW1, RA, f"s{S_XO}", 1024)
        self.dma(SW0, RA, f"s{S_T}", 2048)
        self.dma(SW1, RA, f"s{S_T}", 3072)
        a(f"s_add_u32 m0, s69, 4096\ns_sub_u32 s{S_XO}, s{S_XO}, 512")
        self.dma(L16, RB, f"s{S_WO_}")
        self.dma(L16, RB, f"s{S_WO_}", 1024)
        a("s_mov_b32 exec_hi, 0")
        self.dma(L16, RB, f"s{S_WO_}", 2048)
        a(f"""
        s_mov_b32 exec_hi, -1
        s_sub_u32 s{S_WO_}, s{S_WO_}, {4*2560}
        s_sub_u32 s69, s69, {4*CH}
        s_sub_u32 s{S_I}, s{S_I}, 1
        s_cmp_lg_u32 s{S_I}, 0
        s_cbranch_scc1 L_kv_issue
        """)
        self.frag_lanes()
        self.tr_lanes(AW, 40)
        for s in range(4):
            a(f"v_add_u32 v{AX+s}, s{S_B}, v{FR[s]}")
        a(f"s_add_u32 s{S_T}, s{S_B}, 4096\nv_add_u32 v{AW}, s{S_T}, v{AW}")
        for i in range(16):
            a(f"v_mov_b32 v{i}, 0")
        a(f"""
        L_kv_loop:
        s_waitcnt vmcnt(14)
        s_cmp_eq_u32 s{S_N}, 3
        s_cbranch_scc1 L_kv_go
        s_waitcnt vmcnt(7)
        s_cmp_eq_u32 s{S_N}, 2
        s_cbranch_scc1 L_kv_go
        s_waitcnt vmcnt(0)
        L_kv_go:
        """)
        for s in range(4):
            a(f"ds_read_b128 {vr(XF+4*s,4)}, v{AX+s}")
            for j in range(2):
                a(f"ds_read_b64_tr_b16 {vr(WF+4*s+2*j,2)}, v{AW} offset:{(16*s+4*j)*40}")
        for s in range(4):
            a(f"v_subrev_u32 v{AX+s}, {4*CH}, v{AX+s}")
        a(f"""
        v_subrev_u32 v{AW}, {4*CH}, v{AW}
        s_cmp_eq_u32 s{S_WH}, 1
        s_cbranch_scc1 L_kv_v
        """)
        for s in range(4):
            a(f"s_waitcnt lgkmcnt({9-3*s})")
            a(f"v_mfma_f32_32x32x16_bf16 v[0:15], {vr(WF+4*s,4)}, {vr(XF+4*s,4)}, v[0:15]")
        a("s_branch L_kv_next\nL_kv_v:")
        for s in range(4):
            a(f"s_waitcnt lgkmcnt({9-3*s})")
            a(f"v_mfma_f32_32x32x16_bf16 v[0:15], {vr(XF+4*s,4)}, {vr(WF+4*s,4)}, v[0:15]")
        a(f"""
        L_kv_next:
        s_sub_u32 s{S_N}, s{S_N}, 1
        s_cmp_lg_u32 s{S_N}, 0
        s_cbranch_scc1 L_kv_loop
        s_lshl_b32 s{S_T}, s{S_W}, 12
        s_add_u32 s{S_T}, s{S_T}, {RED-4096}
        v_add_u32 v{AX}, s{S_T}, v{L16}
        s_cmp_eq_u32 s{S_W}, 0
        s_cbranch_scc1 L_kv_w0
        s_nop 7
        """)
        for q in range(4):
            a(f"ds_write_b128 v{AX}, {vr(4*q,4)} offset:{1024*q}")
        a("s_waitcnt lgkmcnt(0)\ns_barrier\ns_branch L_kv_done\nL_kv_w0:\ns_barrier")
        for w in range(3):
            for q in range(4):
                a(f"ds_read_b128 {vr(56+16*w+4*q,4)}, v{AX} offset:{4096*(w+1)+1024*q}")
        self.srd(RA, P_WS, KV_BYTES, WS_KV)
        a(f"""
        s_lshr_b32 s64, s{S_KT}, 1
        s_mul_i32 s64, s64, 5376
        s_and_b32 s65, s{S_KT}, 1
        s_lshl_b32 s66, s{S_KT}, 7
        s_lshl_b32 s{S_T}, s{S_WH}, 2
        s_add_u32 s66, s66, s{S_T}
        v_mov_b32 v50, 0
        """)
        for w in range(3):
            a(f"s_waitcnt lgkmcnt({8-4*w})")
            for i in range(0, 16, 2):
                a(f"v_pk_add_f32 {vr(i,2)}, {vr(i,2)}, {vr(56+16*w+i,2)}")
        for i in range(8):
            a(f"v_cvt_pk_bf16_f32 v{16+i}, v{2*i}, v{2*i+1}")
        a(f"""
        s_cmp_eq_u32 s{S_WH}, 1
        s_cbranch_scc1 L_kv_stv
        v_and_b32 v24, 0x33, v{LANE}
        v_bfe_u32 v25, v{LANE}, 2, 1
        v_bfe_u32 v26, v{LANE}, 3, 1
        v_lshl_add_u32 v24, v25, 3, v24
        v_lshl_add_u32 v24, v26, 2, v24
        v_cmp_lt_u32 vcc, 31, v{LANE}
        v_lshlrev_b32 v25, 4, v24
        v_lshlrev_b32 v26, 2, v24
        s_lshl_b32 s67, s65, 10
        s_add_u32 s67, s67, s64
        s_lshl_b32 s68, s65, 8
        s_add_u32 s68, s68, s64
        v_cndmask_b32 v20, v20, v21, vcc
        buffer_store_dwordx4 v[16:19], v25, {sr(RA,4)}, s67 offen sc1
        buffer_store_dword v20, v26, {sr(RA,4)}, s68 offen offset:2048 sc1
        v_cndmask_b32 v8, v8, v10, vcc
        v_cndmask_b32 v9, v9, v11, vcc
        v_mul_f32 v30, v0, v0
        """)
        for i in range(1, 10):
            a(f"v_fmac_f32 v30, v{i}, v{i}")
        a("""
        v_mov_b32 v31, v30
        v_permlane32_swap_b32 v30, v31
        v_add_f32 v30, v30, v31
        v_max_f32_dpp v30, v30, v30 row_ror:8 row_mask:0xf bank_mask:0xf
        v_max_f32_dpp v30, v30, v30 row_ror:4 row_mask:0xf bank_mask:0xf
        v_max_f32_dpp v30, v30, v30 row_ror:2 row_mask:0xf bank_mask:0xf
        v_max_f32_dpp v30, v30, v30 row_ror:1 row_mask:0xf bank_mask:0xf
        v_mov_b32 v31, v30
        v_permlane16_swap_b32 v30, v31
        v_max_f32 v30, v30, v31
        v_or_b32 v30, 1, v30
        s_branch L_kv_flag
        L_kv_stv:
        """)
        a(f"""
        v_and_b32 v24, 31, v{LANE}
        v_lshrrev_b32 v25, 5, v{LANE}
        v_cmp_lt_u32 vcc, 19, v24
        v_mul_u32_u24 v25, 352, v25
        v_mov_b32 v26, 0x3f803f80
        v_lshl_add_u32 v25, v24, 4, v25
        s_mul_i32 s67, s65, 1408
        s_add_u32 s67, s67, s64
        """)
        for i in range(8):
            a(f"v_cndmask_b32 v{16+i}, v{16+i}, v26, vcc")
        a(f"""
        s_mov_b32 exec_lo, 0x3fffff
        s_mov_b32 exec_hi, 0x3fffff
        buffer_store_dwordx4 v[16:19], v25, {sr(RA,4)}, s67 offen offset:2560 sc1
        buffer_store_dwordx4 v[20:23], v25, {sr(RA,4)}, s67 offen offset:{2560+704} sc1
        s_mov_b64 exec, -1
        v_mov_b32 v30, 1
        L_kv_flag:
        """)
        self.stamp(1)
        self.poll_eq(RD, "0", 1, va=50, vd=51)
        a(f"""
        s_mov_b64 exec, 1
        buffer_store_dword v30, v50, {sr(RW,4)}, s66 offen sc1
        s_mov_b64 exec, -1
        """)
        self.stamp(2)
        a("""
        L_kv_done:
        s_setprio 0
        s_branch L_kv_end
        L_kv_skip:
        """)
        self.frag_lanes()
        a(f"""
        s_cmp_lg_u32 s2, 511
        s_cbranch_scc1 L_kv_end
        s_cmp_lg_u32 s{S_W}, 0
        s_cbranch_scc1 L_kv_end
        v_lshlrev_b32 v1, 7, v{LANE}
        v_mov_b32 v2, 0
        v_mov_b32 v3, 0
        s_movk_i32 s{S_T}, 0x2000
        buffer_store_dwordx2 v[2:3], v1, {sr(RW,4)}, 0 offen sc1
        buffer_store_dwordx2 v[2:3], v1, {sr(RW,4)}, s{S_T} offen sc1
        v_mov_b32 v4, 1
        s_waitcnt vmcnt(0)
        s_mov_b64 exec, 1
        buffer_store_dword v4, v2, {sr(RD,4)}, 0 offen sc1
        s_mov_b64 exec, -1
        L_kv_end:
        """)

    def cpow(self, dst, n, va, vb, t):
        self.a(f"""
        v_mul_f32 v{t}, {n}, v{va}
        v_mul_f32 v{t+1}, {n}, v{vb}
        v_exp_f32 v{t}, v{t}
        v_fract_f32 v{t+1}, v{t+1}
        v_cos_f32 v{dst}, v{t+1}
        v_sin_f32 v{dst+1}, v{t+1}
        v_mul_f32 v{dst}, v{t}, v{dst}
        v_mul_f32 v{dst+1}, v{t}, v{dst+1}
        """)

    def cmad(self, dr, di, l, xr, xi, cr, ci):
        self.a(f"""
        v_fma_f32 v{dr}, v{l}, v{xr}, {cr}
        v_fma_f32 v{di}, v{l}, v{xi}, {ci}
        v_fma_f32 v{dr}, -v{l+1}, v{xi}, v{dr}
        v_fma_f32 v{di}, v{l+1}, v{xr}, v{di}
        """)

    def pkstep(self, dr, di, pr, pi, ur, ui, l, conj=False):
        lo = "op_sel:[0,0,0] op_sel_hi:[1,0,1]"
        hi = "op_sel:[0,1,0] op_sel_hi:[1,1,1]"
        neg = " neg_lo:[0,1,0] neg_hi:[0,1,0]"
        self.a(f"""
        v_pk_fma_f32 {vr(dr,2)}, {vr(pr,2)}, {vr(l,2)}, {vr(ur,2)} {lo}
        v_pk_fma_f32 {vr(di,2)}, {vr(pi,2)}, {vr(l,2)}, {vr(ui,2)} {lo}
        v_pk_fma_f32 {vr(dr,2)}, {vr(pi,2)}, {vr(l,2)}, {vr(dr,2)} {hi}{'' if conj else neg}
        v_pk_fma_f32 {vr(di,2)}, {vr(pr,2)}, {vr(l,2)}, {vr(di,2)} {hi}{neg if conj else ''}
        """)

    def u_job(self):
        a = self.a
        S_TB, S_CG, S_XO, S_BO, S_XM, S_BM = 62, 63, 64, 65, 66, 67
        XRING, BRING = 0, 36864
        D = [0, 16, 32]
        BF, XF = 48, 64
        VX, AXU, AB = 112, 116, 120
        PL = 124
        a(f"""
        s_lshr_b32 s70, s{S_X}, 1
        s_cmp_lt_u32 s70, 2
        s_cselect_b32 s71, 30, 25
        s_sub_u32 s72, 31, s{S_S}
        s_cmp_ge_u32 s72, s71
        s_cbranch_scc1 L_u_idle
        s_lshl_b32 s70, s70, 3
        s_lshr_b32 s{S_TB}, 0x110c0600, s70
        s_and_b32 s{S_TB}, s{S_TB}, 0xff
        s_mul_i32 s70, s72, 52
        s_lshr_b32 s70, s70, 8
        s_add_u32 s{S_TB}, s{S_TB}, s70
        s_mul_i32 s70, s70, 5
        s_sub_u32 s72, s72, s70
        s_and_b32 s70, s{S_X}, 1
        s_mul_i32 s70, s70, 5
        s_add_u32 s{S_CG}, s72, s70
        s_lshl_b32 s{S_CG}, s{S_CG}, 2
        s_add_u32 s{S_CG}, s{S_CG}, s{S_W}
        """)
        a(f"""
        v_and_b32 v1, 15, v{LANE}
        v_lshlrev_b32 v1, 1, v1
        s_lshl_b32 s70, s{S_CG}, 5
        v_add_u32 v1, s70, v1
        global_load_ushort v{PL}, v1, s[{P_LRE}:{P_LRE+1}]
        global_load_ushort v{PL+1}, v1, s[{P_LIM}:{P_LIM+1}]
        global_load_ushort v{PL+2}, v1, s[{P_LDT}:{P_LDT+1}]
        """)
        self.srd(RA, P_BX, X_BYTES)
        self.srd(RB, P_BRE, W_BYTES)
        self.srd(RC, P_BIM, W_BYTES)
        a(f"""
        s_and_b32 s70, s{S_W}, 1
        s_lshr_b32 s71, s{S_W}, 1
        s_mul_i32 s71, s71, 24
        s_lshl_b32 s72, s70, 1
        s_add_u32 s71, s71, s72
        s_mul_i32 s72, s{S_TB}, 96
        s_add_u32 s71, s71, s72
        s_mul_i32 s{S_XO}, s71, 1280
        s_mul_i32 s{S_BO}, s{S_CG}, {16*1280}
        s_mul_i32 s{S_XM}, s{S_W}, 3072
        s_lshl_b32 s{S_BM}, s{S_W}, 13
        s_add_u32 s{S_BM}, s{S_BM}, {BRING}
        s_lshl_b32 s70, s70, 6
        v_lshrrev_b32 v1, 5, v{LANE}
        v_bfe_u32 v2, v{LANE}, 3, 1
        v_bfe_u32 v3, v{LANE}, 4, 1
        v_mul_u32_u24 v1, 48, v1
        v_mul_u32_u24 v2, 12, v2
        v_add3_u32 v1, v1, v2, v3
        v_mul_u32_u24 v1, 1280, v1
        v_and_b32 v2, 0x70, v{SW0}
        v_xor_b32 v2, s70, v2
        v_add_u32 v{VX}, v1, v2
        """)
        q = VMQ()
        q.push("par", 3)

        def issue_x(c):
            a(f"s_add_u32 m0, s{S_XM}, {XRING + (c % 3) * 12288}")
            for m in range(3):
                a(f"s_add_u32 s70, s{S_XO}, {128*c + 4096*m}")
                self.dma(VX, RA, "s70", 1024 * m)
            q.push(("c", c), 3)

        def issue_b(c):
            a(f"s_add_u32 m0, s{S_BM}, {(c & 1) * 4096}\ns_add_u32 s70, s{S_BO}, {128*c}")
            self.dma(SW0, RB, "s70")
            self.dma(SW1, RB, "s70", 1024)
            a(f"s_add_u32 m0, s{S_BM}, {(c & 1) * 4096 + 2048}")
            self.dma(SW0, RC, "s70")
            self.dma(SW1, RC, "s70", 1024)
            q.push(("c", c), 4)

        for c in range(2):
            issue_x(c)
            issue_b(c)
        a(f"v_bfe_u32 v1, v{LANE}, 3, 2\nv_lshlrev_b32 v1, 11, v1")
        for s in range(4):
            a(f"v_add_u32 v{AXU+s}, v1, v{FR[s]}\nv_add_u32 v{AB+s}, s{S_BM}, v{FR[s]}")
        LA, LB, T = 128, 129, 130
        L1, L12, L24, LRHO, ARHO, A4, CF = 132, 134, 136, 138, 140, 142, 144
        a(f"s_waitcnt vmcnt({q.cover('par')})")
        a(f"""
        v_lshlrev_b32 v{PL}, 16, v{PL}
        v_lshlrev_b32 v{PL+1}, 16, v{PL+1}
        v_lshlrev_b32 v{PL+2}, 16, v{PL+2}
        v_mul_f32 v{PL+2}, {fbits(LOG2E)}, v{PL+2}
        v_exp_f32 v{PL+2}, v{PL+2}
        v_lshrrev_b32 v{PL+3}, 4, v{LANE}
        v_cvt_pk_bf16_f32 v{PL+2}, v{PL+2}, v{PL+2}
        v_cvt_f32_u32 v{PL+3}, v{PL+3}
        v_lshlrev_b32 v{PL+2}, 16, v{PL+2}
        v_mul_f32 v{LA}, v{PL+2}, v{PL}
        v_mul_f32 v{LB}, v{PL+2}, v{PL+1}
        v_mul_f32 v{LA}, {fbits(LOG2E)}, v{LA}
        v_mul_f32 v{LB}, {fbits(1/(2*math.pi))}, v{LB}
        """)
        self.cpow(L1, "1.0", LA, LB, T)
        self.cpow(L12, fbits(12.0), LA, LB, T)
        self.cpow(L24, fbits(24.0), LA, LB, T)
        self.cpow(A4, fbits(384.0), LA, LB, T)
        a(f"v_mul_f32 v{PL+3}, {fbits(24.0)}, v{PL+3}")
        self.cpow(LRHO, f"v{PL+3}", LA, LB, T)
        a(f"v_mul_f32 v{PL+3}, 4.0, v{PL+3}")
        self.cpow(ARHO, f"v{PL+3}", LA, LB, T)
        a(f"""
        v_mul_f32 v{T}, v{PL}, v{PL}
        v_fmac_f32 v{T}, v{PL+1}, v{PL+1}
        v_rcp_f32 v{T}, v{T}
        v_add_f32 v{T+1}, -1.0, v{L1}
        v_mul_f32 v{CF}, v{T+1}, v{PL}
        v_mul_f32 v{CF+1}, v{L1+1}, v{PL}
        v_add_f32 v{T}, v{T}, v{T}
        v_fmac_f32 v{CF}, v{L1+1}, v{PL+1}
        v_fma_f32 v{CF+1}, -v{T+1}, v{PL+1}, v{CF+1}
        v_mul_f32 v{CF}, v{T}, v{CF}
        v_mul_f32 v{CF+1}, v{T}, v{CF+1}
        """)
        self.stamp(3)
        for c in range(10):
            a(f"s_waitcnt vmcnt({q.cover(('c', c))})\ns_barrier")
            xo, bo = XRING + (c % 3) * 12288, (c & 1) * 4096
            for s in range(4):
                a(f"ds_read_b128 {vr(BF+4*s,4)}, v{AB+s} offset:{bo}")
            for s in range(2):
                for m in range(3):
                    a(f"ds_read_b128 {vr(XF+12*s+4*m,4)}, v{AXU+s} offset:{xo+1024*m}")
            if c + 2 < 10:
                issue_x(c + 2)
            a("s_waitcnt lgkmcnt(3)")
            if c + 2 < 10:
                issue_b(c + 2)
            for s in range(4):
                if s:
                    a(f"s_waitcnt lgkmcnt({3 if s < 3 else 0})")
                for m in range(3):
                    cin = "0" if c == 0 and s == 0 else vr(D[m], 16)
                    a(f"v_mfma_f32_32x32x16_bf16 {vr(D[m],16)}, {vr(XF+12*s+4*m,4)}, {vr(BF+4*s,4)}, {cin}")
                    if s < 2:
                        a(f"ds_read_b128 {vr(XF+12*(s+2)+4*m,4)}, v{AXU+s+2} offset:{xo+1024*m}")
        self.stamp(4)
        DA, DE, DV = 146, 147, 148
        a(f"""
        v_and_b32 v{DE}, 1, v{LANE}
        v_lshlrev_b32 v{DA}, 7, v{DE}
        v_mul_u32_u24 v{DE}, 35, v{DE}
        v_add_u32 v{DE}, 1, v{DE}
        buffer_load_dword v{DV}, v{DA}, {sr(RD,4)}, 0 offen sc1
        """)
        for m in range(3):
            for r in range(8):
                a(f"v_permlane16_swap_b32 v{D[m]+r}, v{D[m]+8+r}")
        ur = lambda i: D[i >> 2] + 2 * (i & 3)
        ui = lambda i: ur(i) + 8
        PA = [(48, 50), (52, 54)]
        pr, pi = ur(0), ui(0)
        for i in range(1, 12):
            dr, di = PA[i & 1]
            self.pkstep(dr, di, pr, pi, ur(i), ui(i), L1)
            pr, pi = dr, di
        EA_R, EA_I, EB_R, EB_I = pr, pi, pr + 1, pi + 1
        G = 56
        self.cmad(G, G + 4, L12, EA_R, EA_I, f"v{EB_R}", f"v{EB_I}")
        for b in (G, G + 4):
            a(f"""
            v_mov_b32 v{b+1}, v{b}
            v_permlane16_swap_b32 v{b}, v{b+1}
            v_mov_b32 v{b+2}, v{b}
            v_mov_b32 v{b+3}, v{b+1}
            v_permlane32_swap_b32 v{b}, v{b+2}
            v_permlane32_swap_b32 v{b+1}, v{b+3}
            """)
        P2, P3, EE, PP = 64, 66, 68, 70
        self.cmad(P2, P2 + 1, L24, G, G + 4, f"v{G+1}", f"v{G+5}")
        self.cmad(P3, P3 + 1, L24, P2, P2 + 1, f"v{G+2}", f"v{G+6}")
        self.cmad(EE, EE + 1, L24, P3, P3 + 1, f"v{G+3}", f"v{G+7}")
        EO, EV = 72, 80
        a(f"""
        v_or_b32 v{EE}, 1, v{EE}
        v_or_b32 v{EE+1}, 1, v{EE+1}
        v_and_b32 v{T}, 15, v{LANE}
        v_lshlrev_b32 v{T}, 3, v{T}
        s_mul_i32 s70, s{S_TB}, 5120
        s_lshl_b32 s71, s{S_CG}, 7
        s_add_u32 s71, s71, {WS_E}
        s_add_u32 s70, s70, s71
        s_waitcnt vmcnt(0)
        v_cmp_ne_u32 vcc, v{DV}, v{DE}
        s_cbranch_vccz L_u_ready
        """)
        self.poll(DA, RD, "0", DV, 1, lambda: a(f"v_cmp_ne_u32 vcc, v{DV}, v{DE}"), sleep=8)
        a(f"""
        L_u_ready:
        s_mov_b64 exec, 0xffff
        buffer_store_dwordx2 {vr(EE,2)}, v{T}, {sr(RW,4)}, s70 offen sc1
        s_mov_b64 exec, -1
        v_mov_b32 v{PP}, 0
        v_mov_b32 v{PP+1}, 0
        v_lshrrev_b32 v{T+1}, 4, v{LANE}
        s_sub_u32 s72, s{S_TB}, 1
        v_sub_u32 v{T+1}, s72, v{T+1}
        v_mov_b32 v{EV}, {FAR:#x}
        """)
        for src, mask in (((G, G + 4), 2), ((P2, P2 + 1), 4), ((P3, P3 + 1), 8)):
            for k in range(2):
                a(f"v_mov_b32_dpp v{PP+k}, v{src[k]} quad_perm:[0,1,2,3] row_mask:{mask:#x} bank_mask:0xf")
        for i in range(6):
            a(f"""
            v_cmp_le_i32 vcc, {4*i}, v{T+1}
            v_subrev_u32 v{EV+1}, {4*i}, v{T+1}
            v_mul_u32_u24 v{EV+1}, 5120, v{EV+1}
            v_add_u32 v{EV+1}, v{EV+1}, v{T}
            v_cndmask_b32 v{EO+i}, v{EV}, v{EV+1}, vcc
            v_lshrrev_b32 v{106+i}, 30, v{EO+i}
            """)
        lo = "op_sel:[0,0] op_sel_hi:[1,0]"
        hi3 = "op_sel:[0,1,0] op_sel_hi:[1,1,1]"
        lo3 = "op_sel:[0,0,0] op_sel_hi:[1,0,1]"
        for i in range(12):
            t = 92 + 4 * (i & 1)
            a(f"""
            v_pk_mul_f32 {vr(t,2)}, {vr(ur(i),2)}, {vr(CF,2)} op_sel:[0,1] op_sel_hi:[1,1]
            v_pk_mul_f32 {vr(ur(i),2)}, {vr(ur(i),2)}, {vr(CF,2)} {lo}
            v_pk_fma_f32 {vr(ur(i),2)}, {vr(ui(i),2)}, {vr(CF,2)}, {vr(ur(i),2)} {hi3} neg_lo:[0,1,0] neg_hi:[0,1,0]
            v_pk_fma_f32 {vr(ui(i),2)}, {vr(ui(i),2)}, {vr(CF,2)}, {vr(t,2)} {lo3} neg_lo:[0,1,1] neg_hi:[0,1,1]
            """)
        self.stamp(5)
        l, d = self.lab("epoll"), self.lab("epolled")
        a(f"s_mov_b32 s{S_T}, {SPIN}\n{l}:")
        for i in range(6):
            a(f"buffer_load_dwordx2 {vr(EV+2*i,2)}, v{EO+i}, {sr(RW,4)}, s71 offen sc1")
        a(f"s_sub_u32 s{S_T}, s{S_T}, 1\ns_cbranch_scc1 {d}\ns_waitcnt vmcnt(0)")
        for i in range(6):
            a(f"v_and_or_b32 v{92+i}, v{EV+2*i}, v{EV+2*i+1}, v{106+i}")
        a(f"""
        v_bitop3_b32 v92, v92, v93, v94 bitop3:0x80
        v_bitop3_b32 v95, v95, v96, v97 bitop3:0x80
        v_bitop3_b32 v92, v92, v95, 1 bitop3:0x80
        v_cmp_eq_u32 vcc, 0, v92
        s_cbranch_vccz {d}
        s_sleep 6
        s_branch {l}
        {d}:
        s_waitcnt vmcnt(0)
        """)
        self.stamp(6)
        xr, xi = EV + 10, EV + 11
        for n, i in enumerate((4, 3, 2, 1, 0)):
            t = 92 + 2 * (n & 1)
            self.cmad(t, t + 1, A4, xr, xi, f"v{EV+2*i}", f"v{EV+2*i+1}")
            xr, xi = t, t + 1
        self.cmad(96, 98, ARHO, xr, xi, "0", "0")
        for sw in ("v_permlane16_swap_b32", "v_permlane32_swap_b32"):
            a(f"""
            v_mov_b32 v97, v96
            v_mov_b32 v99, v98
            {sw} v96, v97
            {sw} v98, v99
            v_add_f32 v96, v96, v97
            v_add_f32 v98, v98, v99
            """)
        SR_, SI_ = 100, 102
        self.cmad(SR_, SI_, LRHO, 96, 98, f"v{PP}", f"v{PP+1}")
        self.cmad(SR_ + 1, SI_ + 1, L12, SR_, SI_, f"v{EA_R}", f"v{EA_I}")
        a(f"""
        v_pk_mul_f32 v[92:93], {vr(SR_,2)}, {vr(CF,2)} op_sel:[0,1] op_sel_hi:[1,1]
        v_pk_mul_f32 {vr(SR_,2)}, {vr(SR_,2)}, {vr(CF,2)} {lo}
        v_pk_fma_f32 {vr(SR_,2)}, {vr(SI_,2)}, {vr(CF,2)}, {vr(SR_,2)} {hi3} neg_lo:[0,1,0] neg_hi:[0,1,0]
        v_pk_fma_f32 {vr(SI_,2)}, {vr(SI_,2)}, {vr(CF,2)}, v[92:93] {lo3} neg_lo:[0,1,1] neg_hi:[0,1,1]
        """)
        pr, pi = SR_, SI_
        for i in range(12):
            self.pkstep(ur(i), ui(i), pr, pi, ur(i), ui(i), L1, conj=True)
            pr, pi = ur(i), ui(i)
        HB, AH = 48, 104
        a(f"""
        v_and_b32 v{AH}, 15, v{LANE}
        v_lshrrev_b32 v{AH+1}, 4, v{LANE}
        v_mul_u32_u24 v{AH}, 208, v{AH}
        v_mul_u32_u24 v{AH+1}, 48, v{AH+1}
        v_add3_u32 v{AH}, v{AH}, v{AH+1}, s{S_BM}
        v_lshrrev_b32 v{AH+1}, 5, v{LANE}
        v_bfe_u32 v{AH+2}, v{LANE}, 2, 2
        v_lshl_add_u32 v{AH+1}, v{AH+1}, 3, v{AH+2}
        v_mul_u32_u24 v{AH+1}, 208, v{AH+1}
        v_bfe_u32 v{AH+2}, v{LANE}, 4, 1
        v_and_b32 v{AH+3}, 3, v{LANE}
        v_lshl_add_u32 v{AH+2}, v{AH+2}, 2, v{AH+3}
        v_lshlrev_b32 v{AH+2}, 3, v{AH+2}
        v_add3_u32 v{AH+1}, v{AH+1}, v{AH+2}, s{S_BM}
        """)
        for part, f in enumerate((ur, ui)):
            for n in range(12):
                seg, i = n // 6, 2 * (n % 6)
                a(f"v_cvt_pk_bf16_f32 v{HB+12*part+n}, v{f(i)+seg}, v{f(i+1)+seg}")
            for k in range(3):
                a(f"ds_write_b128 v{AH}, {vr(HB+12*part+4*k,4)} offset:{3328*part+16*k}")
        a(f"""
        s_mul_i32 s70, s{S_TB}, {3*80*1024}
        s_lshl_b32 s71, s{S_CG}, 10
        s_add_u32 s70, s70, s71
        s_add_u32 s70, s70, {WS_H}
        s_waitcnt lgkmcnt(0)
        """)
        for n in range(6):
            tau, part = n >> 1, n & 1
            for jj in range(2):
                a(f"ds_read_b64_tr_b16 {vr(4*n+2*jj,2)}, v{AH+1} offset:{3328*part+832*jj+64*tau}")
        for n in range(6):
            a(f"s_add_u32 s71, s70, {n*40*1024}\ns_waitcnt lgkmcnt({10-2*n})")
            a(f"buffer_store_dwordx4 {vr(4*n,4)}, v{L16}, {sr(RW,4)}, s71 offen sc1")
        a(f"""
        s_lshl_b32 s70, s{S_TB}, 7
        s_add_u32 s70, s70, {WS_HF}
        s_waitcnt vmcnt(0)
        s_barrier
        s_cmp_lg_u32 s{S_W}, 0
        s_cbranch_scc1 L_u_end
        """)
        self.signal_add(RW, "s70")
        a(f"""
        s_branch L_u_end
        L_u_idle:
        s_lshl_b32 s70, s{S_X}, 1
        s_mul_i32 s71, s{S_X}, 7
        s_sub_u32 s71, s71, 20
        s_cmp_lt_u32 s{S_X}, 4
        s_cselect_b32 s70, s70, s71
        s_add_u32 s70, s70, s{S_S}
        s_lshl_b32 s70, s70, 2
        s_add_u32 s70, s70, s{S_W}
        s_lshl_b32 s70, s70, 10
        """)
        self.srd(RA, P_WS, E_BYTES, WS_E)
        a(f"""
        v_mov_b32 v4, 0
        v_mov_b32 v5, 0
        v_mov_b32 v6, 0
        v_mov_b32 v7, 0
        buffer_store_dwordx4 v[4:7], v{L16}, {sr(RA,4)}, s70 offen sc1
        s_movk_i32 s70, 128
        s_waitcnt vmcnt(0)
        s_barrier
        s_cmp_lg_u32 s{S_W}, 0
        s_cbranch_scc1 L_u_end
        """)
        self.signal_add(RD, "s70")
        a("L_u_end:")
        self.stamp(7)

    def y_job(self):
        a = self.a
        S_KT, S_CY, S_CO, S_M = 62, 63, 64, 65
        ACC = [0, 16, 32, 48, 64]
        HF, CFR, AC = 80, 160, 192
        XD, DK = 196, 206
        a(f"""
        s_lshr_b32 s{S_KT}, s{S_S}, 2
        s_lshl_b32 s70, s{S_X}, 3
        s_add_u32 s{S_KT}, s{S_KT}, s70
        s_and_b32 s{S_CY}, s{S_S}, 3
        s_cmp_lt_u32 s{S_W}, 2
        s_cselect_b32 s{RA}, s{P_CRE}, s{P_CIM}
        s_cselect_b32 s{RA+1}, s{P_CRE+1}, s{P_CIM+1}
        s_mov_b32 s{RA+2}, {W_BYTES}
        s_mov_b32 s{RA+3}, 0x20000
        s_mul_i32 s{S_CO}, s{S_CY}, {160*1280}
        s_and_b32 s70, s{S_W}, 1
        s_mul_i32 s70, s70, 640
        s_add_u32 s{S_CO}, s{S_CO}, s70
        s_mul_i32 s{S_M}, s{S_W}, 20480
        """)
        q = VMQ()

        def issue(c, ct):
            o = ct * 32 * 1280 + 128 * c
            a(f"s_add_u32 m0, s{S_M}, {4096*ct}\ns_add_u32 s70, s{S_CO}, {o}\ns_add_u32 s71, s{S_CO}, {o+16*1280-2048}")
            self.dma(SW0, RA, "s70")
            self.dma(SW1, RA, "s70", 1024)
            self.dma(SW0, RA, "s71", 2048)
            self.dma(SW1, RA, "s71", 3072)
            q.push((c, ct), 4)

        for ct in range(5):
            issue(0, ct)
        self.srd(RB, P_BX, X_BYTES)
        self.srd(RC, P_OUT, OUT_BYTES)
        for s in range(4):
            a(f"v_add_u32 v{AC+s}, s{S_M}, v{FR[s]}")
        a(f"""
        v_lshrrev_b32 v1, 3, v{LANE}
        v_and_b32 v2, 7, v{LANE}
        v_mul_u32_u24 v1, 1280, v1
        v_lshlrev_b32 v2, 3, v2
        s_lshl_b32 s70, s{S_KT}, 2
        s_add_u32 s70, s70, s{S_W}
        s_mul_i32 s70, s70, {8*1280}
        s_mul_i32 s71, s{S_CY}, 320
        s_add_u32 s70, s70, s71
        v_add_u32 v1, v1, v2
        v_add_u32 v2, s71, v2
        """)
        for ct in range(5):
            a(f"buffer_load_dwordx2 {vr(XD+2*ct,2)}, v1, {sr(RB,4)}, s70 offen offset:{64*ct}")
            a(f"global_load_dwordx2 {vr(DK+2*ct,2)}, v2, s[{P_DSK}:{P_DSK+1}] offset:{64*ct}")
        q.push("skip", 10)
        a(f"""
        s_cmp_lg_u32 s{S_W}, 0
        s_cbranch_scc1 L_y_go
        s_mul_i32 s70, s{S_KT}, 43
        s_lshr_b32 s70, s70, 7
        s_lshl_b32 s70, s70, 7
        s_add_u32 s70, s70, {WS_HF}
        """)
        self.poll_eq(RW, "s70", 10, sleep=6)
        a(f"""
        L_y_go:
        s_mul_i32 s72, s{S_KT}, {80*1024}
        s_add_u32 s72, s72, s{S_M}
        s_add_u32 s72, s72, {WS_H}
        s_barrier
        """)
        self.stamp(8)
        for n in range(20):
            if n % 4 == 0 and n:
                a("s_add_u32 s72, s72, 4096")
            o = f" offset:{1024*(n%4)}" if n % 4 else ""
            a(f"buffer_load_dwordx4 {vr(HF+4*n,4)}, v{L16}, {sr(RW,4)}, s72 offen{o} sc1")
            q.push(("h", n // 4))
        units = [(c, ct) for c in range(5) for ct in range(5)]

        def wait(*tags):
            ns = [n for n in (q.cover(t) for t in tags) if n is not None]
            if ns:
                a(f"s_waitcnt vmcnt({min(ns)})")

        def reads(i):
            c, ct = units[i]
            wait((c, ct))
            for s in range(4):
                a(f"ds_read_b128 {vr(CFR+16*(i&1)+4*s,4)}, v{AC+s} offset:{4096*ct}")

        reads(0)
        for i, (c, ct) in enumerate(units):
            a("s_waitcnt lgkmcnt(0)")
            if c < 4:
                issue(c + 1, ct)
            if i + 1 < 25:
                reads(i + 1)
            wait(("h", c))
            for s in range(4):
                cin = "0" if c == 0 and s == 0 else vr(ACC[ct], 16)
                a(f"v_mfma_f32_32x32x16_bf16 {vr(ACC[ct],16)}, {vr(CFR+16*(i&1)+4*s,4)}, {vr(HF+16*c+4*s,4)}, {cin}")
        self.stamp(9)
        AWR, ARD, AST = 160, 164, 165
        a(f"""
        v_and_b32 v{ARD}, 31, v{LANE}
        v_lshrrev_b32 v{AST}, 5, v{LANE}
        v_and_b32 v{AWR}, 7, v{LANE}
        v_mul_u32_u24 v{ARD}, 640, v{ARD}
        v_xor_b32 v{AWR}, v{AWR}, v{AST}
        v_lshlrev_b32 v{AWR}, 4, v{AWR}
        v_add3_u32 v{AWR}, v{AWR}, v{ARD}, s{S_M}
        v_xor_b32 v{AWR+1}, 32, v{AWR}
        v_xor_b32 v{AWR+2}, 64, v{AWR}
        v_xor_b32 v{AWR+3}, 0x60, v{AWR}
        """)
        for ct in range(5):
            for g in range(4):
                a(f"ds_write_b128 v{AWR+g}, {vr(ACC[ct]+4*g,4)} offset:{128*ct}")
        a(f"""
        v_lshrrev_b32 v{AST}, 3, v{LANE}
        v_and_b32 v{AST+1}, 7, v{LANE}
        v_xor_b32 v{ARD}, v{AST}, v{AST+1}
        v_mul_u32_u24 v{AST+2}, 640, v{AST}
        v_lshl_add_u32 v{ARD}, v{ARD}, 4, v{AST+2}
        s_mul_i32 s70, s{S_W}, {8*640}
        v_add_u32 v{ARD}, s70, v{ARD}
        v_mul_u32_u24 v{AST}, 5120, v{AST}
        v_lshl_add_u32 v{AST}, v{AST+1}, 4, v{AST}
        s_lshl_b32 s70, s{S_KT}, 2
        s_add_u32 s70, s70, s{S_W}
        s_mul_i32 s70, s70, {8*5120}
        s_mul_i32 s71, s{S_CY}, 640
        s_add_u32 s70, s70, s71
        s_add_u32 s70, s70, 2560
        """)
        SK = 168
        for ct in range(5):
            for k in range(2):
                x, dk, o = XD + 2 * ct + k, DK + 2 * ct + k, SK + 4 * ct + 2 * k
                a(f"""
                v_lshlrev_b32 v{o}, 16, v{x}
                v_and_b32 v{o+1}, 0xffff0000, v{x}
                v_lshlrev_b32 v190, 16, v{dk}
                v_and_b32 v191, 0xffff0000, v{dk}
                v_pk_mul_f32 {vr(o,2)}, {vr(o,2)}, v[190:191]
                v_cvt_pk_bf16_f32 v{o+1}, v{o}, v{o+1}
                v_lshlrev_b32 v{o}, 16, v{o+1}
                v_and_b32 v{o+1}, 0xffff0000, v{o+1}
                """)
        a("s_waitcnt lgkmcnt(0)\ns_barrier")
        for ct in range(3):
            for w in range(4):
                a(f"ds_read_b128 {vr(16*ct+4*w,4)}, v{ARD} offset:{20480*w+128*ct}")
        for ct in range(5):
            a(f"s_waitcnt lgkmcnt({8 if ct < 3 else 4*(4-ct)})")
            b, o = 16 * ct, SK + 4 * ct
            if ct + 3 < 5:
                for w in range(4):
                    a(f"ds_read_b128 {vr(16*(ct+3)+4*w,4)}, v{ARD} offset:{20480*w+128*(ct+3)}")
            for k in (0, 2):
                a(f"""
                v_pk_add_f32 {vr(b+k,2)}, {vr(b+k,2)}, {vr(b+4+k,2)}
                v_pk_add_f32 {vr(b+8+k,2)}, {vr(b+8+k,2)}, {vr(b+12+k,2)}
                v_pk_add_f32 {vr(o+k,2)}, {vr(o+k,2)}, {vr(b+k,2)}
                v_pk_add_f32 {vr(o+k,2)}, {vr(o+k,2)}, {vr(b+8+k,2)}
                """)
            a(f"buffer_store_dwordx4 {vr(o,4)}, v{AST}, {sr(RC,4)}, s70 offen offset:{128*ct}")
        a("s_barrier")
        self.stamp(10)

    def o_job(self):
        a = self.a
        S_RB, S_CG, S_G, S_SO = 62, 63, 64, 65
        WV = [200, 201, 202, 203, 204]
        AT = 205
        PRE, OF_, ACC, RING = 0, 100, 180, 216

        def base_row(u, jj):
            p, j = divmod(u, 5)
            return 40 * p + (20 * (j >> 1) + 4 * (j & 1) + 8 * jj if j < 4 else 20 * jj + 16)

        a(f"""
        s_lshr_b32 s{S_RB}, s{S_S}, 3
        s_lshl_b32 s70, s{S_X}, 2
        s_add_u32 s{S_RB}, s{S_RB}, s70
        s_and_b32 s{S_CG}, s{S_S}, 7
        """)
        self.srd(RA, P_WO, W_BYTES)
        self.w160_lanes(WV)

        def group_loop(first, last, lds0, tag):
            a(f"""
            s_add_u32 s{S_G}, s{S_W}, {first}
            L_o_{tag}:
            s_mul_i32 s{S_SO}, s{S_G}, {32*1280}
            s_mul_i32 s70, s{S_CG}, 160
            s_add_u32 s{S_SO}, s{S_SO}, s70
            s_mul_i32 s71, s{S_G}, 5120
            s_sub_u32 s71, s71, {first*5120 - lds0}
            s_mov_b32 m0, s71
            s_add_u32 s{S_G}, s{S_G}, 4
            """)
            for i in range(4):
                self.dma(WV[i], RA, f"s{S_SO}", 1024 * i)
            a("s_add_u32 m0, s71, 4096")
            a(f"s_cmp_lt_u32 s{S_G}, {last}")
            self.dma(WV[4], RA, f"s{S_SO}")
            a(f"s_cbranch_scc1 L_o_{tag}")

        group_loop(0, 15, 0, "a")
        a(f"""
        v_lshrrev_b32 v1, 4, v{LANE}
        v_lshlrev_b32 v1, 3, v1
        v_bfe_u32 v2, v{LANE}, 2, 2
        v_and_b32 v3, 3, v{LANE}
        v_mul_u32_u24 v2, 160, v2
        v_lshl_add_u32 v2, v3, 3, v2
        s_movk_i32 s71, 160
        """)
        for s5 in range(5):
            for jj in range(2):
                lit = sum(base_row(4 * s5 + g, jj) << (8 * g) for g in range(4))
                a(f"s_mov_b32 s70, {lit:#x}\nv_bfe_u32 v3, s70, v1, 8\nv_mad_u32_u24 v{AT+2*s5+jj}, v3, s71, v2")
        POFF = [0, 25600, 51200, 0]

        def wread(dst, s, nt):
            for jj in range(2):
                a(f"ds_read_b64_tr_b16 {vr(dst+2*jj,2)}, v{AT+2*(s%5)+jj} offset:{POFF[s//5]+32*nt}")

        a("s_waitcnt vmcnt(0)\ns_barrier")
        for s in range(5):
            for nt in range(5):
                wread(PRE + 20 * s + 4 * nt, s, nt)
            a("s_waitcnt lgkmcnt(0)")
        a("s_barrier")
        group_loop(15, 20, 0, "b")
        AS = 215
        a(f"""
        v_lshrrev_b32 v{AS}, 4, v{LANE}
        v_and_b32 v{ACC}, 15, v{LANE}
        v_mul_u32_u24 v{AS}, {4*5120}, v{AS}
        v_lshl_add_u32 v{AS}, v{ACC}, 2, v{AS}
        s_lshl_b32 s72, s{S_RB}, 2
        s_add_u32 s72, s72, s{S_W}
        s_mul_i32 s73, s72, {16*5120}
        s_mul_i32 s70, s{S_CG}, 320
        s_add_u32 s73, s73, s70
        s_mul_i32 s72, s72, 20480
        s_add_u32 s72, s72, {WS_O}
        s_waitcnt vmcnt(0)
        """)
        self.stamp(11)
        a(f"""
        s_cmp_lg_u32 s{S_W}, 0
        s_cbranch_scc1 L_o_go
        s_lshl_b32 s70, s{S_RB}, 7
        s_add_u32 s70, s70, {WS_OF}
        """)
        self.poll_eq(RW, "s70", 8, sleep=2, va=ACC, vd=ACC + 1)
        a("L_o_go:\ns_setprio 3\ns_barrier")
        self.stamp(12)
        for n in range(20):
            if n % 4 == 0 and n:
                a("s_add_u32 s72, s72, 4096")
            o = f" offset:{1024*(n%4)}" if n % 4 else ""
            a(f"buffer_load_dwordx4 {vr(OF_+4*n,4)}, v{L16}, {sr(RW,4)}, s72 offen{o} sc1")
        frags = [(s, nt) for s in range(5, 20) for nt in range(5)]
        DEPTH = 7
        slot = lambda i: RING + 4 * (i % 8)
        for i in range(DEPTH):
            wread(slot(i), *frags[i])
        for s in range(20):
            a(f"s_waitcnt vmcnt({19-s})")
            for nt in range(5):
                cin = "0" if s == 0 else vr(ACC + 4 * nt, 4)
                if s < 5:
                    b = PRE + 20 * s + 4 * nt
                else:
                    i = (s - 5) * 5 + nt
                    b = slot(i)
                    left = min(DEPTH - 1, len(frags) - 1 - i)
                    a(f"s_waitcnt lgkmcnt({2*left})")
                a(f"v_mfma_f32_16x16x32_bf16 {vr(ACC+4*nt,4)}, {vr(OF_+4*s,4)}, {vr(b,4)}, {cin}")
                if s >= 5 and i + DEPTH < len(frags):
                    wread(slot(i + DEPTH), *frags[i + DEPTH])
        self.stamp(13)
        for r in range(4):
            if r:
                a("s_add_u32 s73, s73, 5120")
            for nt in range(5):
                a(f"buffer_store_dword v{ACC+4*nt+r}, v{AS}, {sr(RC,4)}, s73 offen offset:{64*nt}")
        if self.diag:
            a("s_waitcnt vmcnt(0)")

    def ssm_role(self):
        self.lanes()
        self.after_kernarg()
        self.srd(RW, P_WS, WS_END)
        self.srd(RD, P_DBG, 256)
        self.kv_job()
        self.u_job()
        self.y_job()
        self.o_job()
        self.finish_wave()

    def att_role(self):
        a = self.a
        S = [0, 16, 32, 48]
        O, NEG = [64, 80], [96, 112]
        Q1, Q2 = [128, 132], [136, 140]
        K1, K2, V = [144, 148], [152, 154], [156, 164, 172]
        IDX, AK, AK2, AV, QN = 180, 181, 182, 183, 184
        WV, TRQ, AX, AW = [186, 187, 188], 189, 190, 194
        FB = 196
        S_RB, S_HG, S_XO, S_WO_, S_C, S_SL, S_RD, S_MX, S_MW = 62, 63, 64, 65, 66, 67, 68, 69, 70
        SLOT, KMAX = 18432, 73728
        a("L_att:")
        self.lanes()
        self.w160_lanes(WV)
        a(f"""
        s_lshr_b32 s{S_RB}, s{S_S}, 3
        s_lshl_b32 s{S_T}, s{S_X}, 2
        s_add_u32 s{S_RB}, s{S_RB}, s{S_T}
        s_and_b32 s{S_HG}, s{S_S}, 7
        s_lshl_b32 s{S_T}, s{S_RB}, 2
        s_add_u32 s{S_T}, s{S_T}, s{S_W}
        s_mul_i32 s{S_XO}, s{S_T}, {16*1280}
        s_mul_i32 s{S_WO_}, s{S_W}, {16*1280}
        s_mul_i32 s{S_T}, s{S_HG}, 160
        s_add_u32 s{S_WO_}, s{S_WO_}, s{S_T}
        s_lshl_b32 s{S_MX}, s{S_W}, 11
        s_mul_i32 s{S_MW}, s{S_W}, 2560
        s_add_u32 s{S_MW}, s{S_MW}, 8192
        s_mov_b32 s{S_SL}, 0
        s_mov_b32 s{S_C}, 0
        """)
        self.after_kernarg()
        self.srd(RA, P_AX, X_BYTES)
        self.srd(RB, P_WQ, W_BYTES)

        def issue():
            a(f"s_add_u32 m0, s{S_SL}, s{S_MX}\ns_add_u32 s{S_C}, s{S_C}, 1")
            self.dma(SW0, RA, f"s{S_XO}")
            self.dma(SW1, RA, f"s{S_XO}", 1024)
            a(f"s_add_u32 m0, s{S_SL}, s{S_MW}\ns_add_u32 s{S_XO}, s{S_XO}, 128")
            self.dma(WV[0], RB, f"s{S_WO_}")
            self.dma(WV[1], RB, f"s{S_WO_}", 1024)
            a("s_mov_b32 exec_hi, 0")
            self.dma(WV[2], RB, f"s{S_WO_}", 2048)
            a(f"""
            s_mov_b32 exec_hi, -1
            s_add_u32 s{S_WO_}, s{S_WO_}, {64*1280}
            s_add_u32 s{S_SL}, s{S_SL}, {SLOT}
            """)

        a("L_q_pre:")
        issue()
        a(f"s_cmp_lt_u32 s{S_C}, 3\ns_cbranch_scc1 L_q_pre")
        self.srd(RW, P_WS, WS_END)
        self.srd(RD, P_DBG, 256)
        self.srd(RC, P_WS, KV_BYTES, WS_KV)
        self.frag_lanes()
        self.tr_lanes(TRQ, 160)
        a(f"""
        s_and_b32 s71, s{S_W}, 1
        s_lshl_b32 s71, s71, 12
        s_lshr_b32 s72, s{S_W}, 1
        s_mul_i32 s72, s72, 80
        s_add_u32 s72, s72, 8192
        s_mov_b32 s{S_RD}, 0
        v_mov_b32 v1, {KMAX}
        v_mov_b32 v2, 0
        ds_write_b32 v1, v2
        """)
        for s in range(4):
            a(f"v_add_u32 v{FR[s]}, s71, v{FR[s]}")
        a(f"v_add_u32 v{TRQ}, s72, v{TRQ}")
        for i in range(32):
            a(f"v_mov_b32 v{i}, 0")
        self.stamp(1)
        a("L_q_loop:")
        for s in range(4):
            a(f"v_add_u32 v{AX+s}, s{S_RD}, v{FR[s]}")
        a(f"""
        v_add_u32 v{AW}, s{S_RD}, v{TRQ}
        s_add_u32 s{S_RD}, s{S_RD}, {SLOT}
        s_cmp_eq_u32 s{S_RD}, {4*SLOT}
        s_cselect_b32 s{S_RD}, 0, s{S_RD}
        s_cmp_ge_u32 s{S_C}, 10
        s_cselect_b32 s{S_XO}, {FAR:#x}, s{S_XO}
        s_waitcnt vmcnt(10) lgkmcnt(0)
        s_barrier
        """)

        def qreads(s):
            b = FB + 12 * s
            a(f"ds_read_b128 {vr(b,4)}, v{AX+s}")
            for hd in range(2):
                for j in range(2):
                    a(f"ds_read_b64_tr_b16 {vr(b+4+4*hd+2*j,2)}, v{AW} offset:{(16*s+4*j)*160+40*hd}")

        qreads(0)
        qreads(1)
        qreads(2)
        issue()
        a(f"s_cmp_eq_u32 s{S_SL}, {4*SLOT}\ns_cselect_b32 s{S_SL}, 0, s{S_SL}")
        for s in range(4):
            a(f"s_waitcnt lgkmcnt({[10,10,5,0][s]})")
            b = FB + 12 * s
            for hd in range(2):
                a(f"v_mfma_f32_32x32x16_bf16 {vr(16*hd,16)}, {vr(b+4+4*hd,4)}, {vr(b,4)}, {vr(16*hd,16)}")
            if s == 0:
                qreads(3)
        a(f"s_cmp_lt_u32 s{S_C}, 13\ns_cbranch_scc1 L_q_loop")
        self.stamp(2)
        a(f"""
        s_cmp_lg_u32 s{S_W}, 0
        s_cbranch_scc1 L_kvw_go
        """)
        self.poll_eq(RD, "0", 1, va=40, vd=41)
        a(f"v_lshlrev_b32 v40, 7, v{LANE}")
        self.poll(40, RW, "0", 42, 2, lambda: a("v_and_b32 v44, v42, v43\nv_cmp_eq_u32 vcc, 0, v44"), sleep=1)
        a(f"""
        v_mov_b32 v40, {KMAX}
        ds_max_u32 v40, v42
        L_kvw_go:
        s_mul_i32 s71, s{S_W}, 3072
        s_lshl_b32 s{S_MX}, s{S_W}, 13
        s_add_u32 s{S_XO}, s{S_MX}, {2*5376}
        s_add_u32 m0, s71, {0x8000+21504}
        s_waitcnt vmcnt(0)
        s_barrier
        """)
        self.stamp(3)
        for i in range(3):
            self.dma(L16, RC, "s71", 1024 * i, sc1=True)
        for g in range(2):
            a(f"s_add_u32 m0, s{S_MX}, {4096*g}\ns_add_u32 s71, s{S_XO}, {4096*g}")
            for i in range(4):
                self.dma(L16, RC, "s71", 1024 * i, sc1=True)
        a(f"s_mov_b32 s72, {fbits(QSCALE)}\nv_cmp_lt_u32 vcc, 31, v{LANE}")
        for hd in range(2):
            b = 16 * hd
            for i in range(12):
                a(f"v_mul_f32 v{b+i}, s72, v{b+i}")
            a(f"v_cndmask_b32 v{b+8}, v{b+8}, v{b+10}, vcc\nv_cndmask_b32 v{b+9}, v{b+9}, v{b+11}, vcc")
            for i in range(4):
                a(f"v_cvt_pk_bf16_f32 v{Q1[hd]+i}, v{b+2*i}, v{b+2*i+1}")
            a(f"""
            v_cvt_pk_bf16_f32 v{Q2[hd]}, v{b+8}, v{b+9}
            v_mov_b32 v{Q2[hd]+1}, 0
            v_mov_b32 v{Q2[hd]+2}, 0
            v_mov_b32 v{Q2[hd]+3}, v{Q2[hd]}
            v_mul_f32 v{QN+hd}, v{b}, v{b}
            """)
            for i in range(1, 10):
                a(f"v_fmac_f32 v{QN+hd}, v{b+i}, v{b+i}")
        a(f"""
        v_permlane32_swap_b32 v{QN}, v{QN+1}
        v_add_f32 v{QN}, v{QN}, v{QN+1}
        v_mov_b32 v{IDX}, 0xdddddddd
        v_add_u32 v{AK}, 0x8000, v{L16}
        v_lshlrev_b32 v{AK2}, 2, v{LANE}
        v_add_u32 v{AK2}, 0x8000, v{AK2}
        v_and_b32 v1, 31, v{LANE}
        v_lshrrev_b32 v2, 5, v{LANE}
        v_min_u32 v1, 20, v1
        v_mul_u32_u24 v2, 352, v2
        v_lshl_add_u32 v{AV}, v1, 4, v2
        v_add_u32 v{AV}, 0x8000, v{AV}
        v_mov_b32 v1, {KMAX}
        """)
        for i in list(range(48, 128)) + list(range(V[1], V[1] + 8)):
            a(f"v_mov_b32 v{i}, 0")

        def rdK1(pos):
            return f"ds_read_b128 {vr(K1[pos&1],4)}, v{AK} offset:{(pos>>1)*5376+(pos&1)*1024}"

        def rdK2(pos):
            p = pos >> 1
            return f"ds_read2st64_b32 {vr(K2[p&1],2)}, v{AK2} offset0:{21*p+8} offset1:{21*p+9}"

        def rdV(pos, op):
            return f"ds_read_b128 {vr(V[pos%3]+4*op,4)}, v{AV} offset:{(pos>>1)*5376+2560+(pos&1)*1408+704*op}"

        def qk(pos, q, d):
            return (f"v_mfma_f32_32x32x16_bf16 {vr(d,16)}, {vr(K1[pos&1],4)}, {vr(Q1[q],4)}, {vr(NEG[q],16)}",
                    f"v_mfma_f32_32x32x8_bf16 {vr(d,16)}, {vr(K2[(pos>>1)&1],2)}, {vr(Q2[q]+2*(pos&1),2)}, {vr(d,16)}")

        def pv(pos, q, p):
            return tuple(f"v_smfmac_f32_32x32x32_bf16 {vr(O[q],16)}, {vr(V[pos%3]+4*op,4)}, {vr(p+8*op,8)}, v{IDX}" for op in range(2))

        a(f"s_waitcnt vmcnt(8) lgkmcnt(0)\ns_barrier\nds_read_b32 v2, v1")
        for ins in (rdK1(8), rdK2(8), rdK1(9), rdV(8, 0), rdV(8, 1), rdV(9, 0), rdV(9, 1)):
            a(ins)
        a(f"""
        s_setprio 2
        s_mov_b32 s{S_C}, 0
        s_mov_b32 s72, {fbits(SAFE_BOUND**2)}
        s_waitcnt lgkmcnt(7)
        v_mul_f32 v2, v2, v{QN}
        v_cmp_nle_f32 vcc, v2, s72
        s_cbranch_vccnz L_rowmax
        L_rowmax_done:
        s_waitcnt lgkmcnt(0)
        """)
        self.stamp(4)
        for q in range(2):
            for ins in qk(8, q, S[q]):
                a(ins)
        a("s_nop 11\ns_branch L_a_p10")

        SL = self.o.get("slots", (0, 6, 3, 10))

        def phase(pos, q, fill, lo=0, hi=17, do_qk=True):
            t = 2 * (pos - 2) + q
            x = S[t % 4]
            ms = list(qk(pos - 1, q, S[(t + 2) % 4])) + list(pv(pos - 2 if q else pos - 3, 1 - q, S[(t - 1) % 4]))
            for e in range(17):
                for i, sl in enumerate(SL):
                    if sl == e and lo <= e < hi and (do_qk or i >= 2) and not (lo and e == lo):
                        a(ms[i])
                        for ins in fill.get(i, []):
                            a(ins)
                if e < 16 and lo <= e < hi - 1:
                    a(f"v_exp_f32 v{x+e}, v{x+e}")

        cut = SL[3]
        a(f"""
        .p2align 6
        L_a_loop:
        s_waitcnt vmcnt(0) lgkmcnt(0)
        s_barrier
        """)
        phase(11 + 12, 1, {}, lo=cut)
        for r in (AK, AK2, AV):
            a(f"v_xor_b32 v{r}, 0x8000, v{r}")
        for pos in range(12):
            p = pos + 12
            if pos == 10:
                a("L_a_p10:")
            fa = {0: [rdK1(pos)], 2: [rdK2(pos)] if pos % 2 == 0 else [], 3: []}
            fb = {0: [rdV(pos, 0)], 2: [rdV(pos, 1)], 3: ["s_waitcnt lgkmcnt(2)"]}
            if 1 <= pos <= 8:
                i = pos - 1
                o = f" offset:{1024*(i%4)}" if i % 4 else ""
                fa[3] = [f"buffer_load_dwordx4 v{L16}, {sr(RC,4)}, s71 offen{o} sc1 lds"]
            if pos == 0:
                fa[3] = [f"s_xor_b32 s{S_MX}, s{S_MX}, 0x8000", f"s_add_u32 s{S_XO}, s{S_XO}, {6*5376}"]
                fb[3] += [f"s_mov_b32 m0, s{S_MX}"]
            if pos == 1:
                fa[2] = [f"s_mov_b32 s71, s{S_XO}"]
            if pos == 4:
                fb[3] += [f"s_add_u32 m0, s{S_MX}, 4096"]
            if pos == 5:
                fa[2] = [f"s_add_u32 s71, s{S_XO}, 4096"]
            if pos == 11:
                fa[2] = [f"s_add_u32 s{S_C}, s{S_C}, 1", f"s_cmp_lt_u32 s{S_C}, 6"]
                fb[3] = ["s_cbranch_scc1 L_a_loop"]
            phase(p, 0, fa)
            phase(p, 1, fb, hi=cut + 1 if pos == 11 else 17)
        a("s_waitcnt lgkmcnt(0)")
        phase(11 + 12, 1, {}, lo=cut)
        phase(24, 0, {})
        phase(24, 1, {})
        phase(25, 0, {}, do_qk=False)
        phase(25, 1, {}, do_qk=False)
        for ins in pv(23, 1, S[(2 * 23 + 1) % 4]):
            a(ins)
        self.stamp(5)
        a(f"""
        v_and_b32 v40, 15, v{LANE}
        v_bfe_u32 v41, v{LANE}, 4, 1
        v_lshrrev_b32 v42, 5, v{LANE}
        v_mul_u32_u24 v41, 20480, v41
        v_lshl_add_u32 v40, v40, 4, v41
        v_lshl_add_u32 v40, v42, 8, v40
        s_and_b32 s71, s{S_W}, 1
        s_lshl_b32 s72, s{S_RB}, 1
        s_add_u32 s71, s71, s72
        s_mul_i32 s71, s71, {2*20480}
        s_lshr_b32 s72, s{S_W}, 1
        s_lshl_b32 s73, s{S_HG}, 1
        s_add_u32 s72, s72, s73
        s_mul_i32 s72, s72, 1280
        s_add_u32 s71, s71, s72
        s_add_u32 s71, s71, {WS_O}
        """)
        for q in range(2):
            o = O[q]
            a(f"v_rcp_f32 v{o+12}, v{o+12}")
            for i in range(0, 12, 2):
                a(f"v_pk_mul_f32 {vr(o+i,2)}, {vr(o+i,2)}, {vr(o+12,2)} op_sel_hi:[1,0]")
            for i in range(4):
                a(f"v_cvt_pk_bf16_f32 v{4*q+i}, v{o+2*i}, v{o+2*i+1}")
            for i in range(2):
                a(f"v_cvt_pk_bf16_f32 v{8+2*q+i}, v{o+8+2*i}, v{o+9+2*i}")
            a(f"buffer_store_dwordx4 {vr(4*q,4)}, v40, {sr(RW,4)}, s71 offen offset:{512*q} sc1")
        a(f"""
        s_mov_b32 exec_hi, 0
        buffer_store_dwordx4 v[8:11], v40, {sr(RW,4)}, s71 offen offset:1024 sc1
        s_mov_b32 exec_hi, -1
        s_lshl_b32 s71, s{S_RB}, 7
        s_add_u32 s71, s71, {WS_OF}
        s_waitcnt vmcnt(0)
        s_barrier
        s_cmp_lg_u32 s{S_W}, 0
        s_cbranch_scc1 L_a_end
        """)
        self.signal_add(RW, "s71", va=20, vd=21)
        a("L_a_end:")
        self.finish_wave()

        T1, T2, M = 200, 208, 212
        a(f"""
        L_rowmax:
        v_lshlrev_b32 v214, 2, v{LANE}
        v_mov_b32 v{M}, 0xff800000
        v_mov_b32 v{M+1}, 0xff800000
        s_mov_b32 s73, 0
        L_rowmax_loop:
        buffer_load_dwordx4 {vr(T1,4)}, v{L16}, {sr(RC,4)}, s73 offen sc1
        buffer_load_dwordx4 {vr(T1+4,4)}, v{L16}, {sr(RC,4)}, s73 offen offset:1024 sc1
        buffer_load_dword v{T2}, v214, {sr(RC,4)}, s73 offen offset:2048 sc1
        buffer_load_dword v{T2+1}, v214, {sr(RC,4)}, s73 offen offset:2304 sc1
        s_add_u32 s73, s73, 5376
        s_waitcnt vmcnt(0)
        """)
        for t in range(2):
            for q in range(2):
                a(f"v_mfma_f32_32x32x16_bf16 {vr(16*q,16)}, {vr(T1+4*t,4)}, {vr(Q1[q],4)}, 0")
                a(f"v_mfma_f32_32x32x8_bf16 {vr(16*q,16)}, {vr(T2,2)}, {vr(Q2[q]+2*t,2)}, {vr(16*q,16)}")
            for q in range(2):
                for i in range(0, 16, 2):
                    a(f"v_max3_f32 v{M+q}, v{16*q+i}, v{16*q+i+1}, v{M+q}")
        a(f"s_cmp_lt_u32 s73, {KV_BYTES}\ns_cbranch_scc1 L_rowmax_loop")
        for q in range(2):
            a(f"""
            v_mov_b32 v214, v{M+q}
            v_permlane32_swap_b32 v{M+q}, v214
            v_max_f32 v{M+q}, v{M+q}, v214
            """)
            for i in range(16):
                a(f"v_sub_f32 v{NEG[q]+i}, 0, v{M+q}")
        a("s_nop 1\ns_branch L_rowmax_done")

    def build(self):
        head = open(f"cdna_kernels/{NAME}.s.ref").read().split("; Override launch geometry")[0]
        self.entry()
        self.ssm_role()
        self.att_role()
        self.a("L_exit:\ns_endpgm")
        body = self.a.finish()
        return (head + "; @launch grid=(512,1,1) block=(256,1,1) lds=81920\n"
                + f""".amdgcn_target "amdgcn-amd-amdhsa--gfx950"
.text
.globl {NAME}_kernel
.p2align 8
.type {NAME}_kernel,@function
{NAME}_kernel:
""" + body + f""".section .rodata,"a"
.p2align 6
.amdhsa_kernel {NAME}_kernel
  .amdhsa_next_free_vgpr 256
  .amdhsa_next_free_sgpr 102
  .amdhsa_accum_offset 256
  .amdhsa_group_segment_fixed_size 0
  .amdhsa_kernarg_size 136
  .amdhsa_user_sgpr_count 2
  .amdhsa_user_sgpr_kernarg_segment_ptr 1
  .amdhsa_system_sgpr_workgroup_id_x 1
.end_amdhsa_kernel
""")


if __name__ == "__main__":
    out = sys.argv[1] if len(sys.argv) > 1 else f"cdna_kernels/{NAME}.s"
    g = Gen(diag="diag" in sys.argv[2:])
    open(out, "w").write(g.build())
    print("written", out, "pads", g.a.pads)
```

```python
import math
import struct
import sys

sys.path.insert(0, "gen")
from asmlib import Asm, VMQ, vr, sr

NAME = "concat_heads__grouped_kv_mqa__ssm_conv_s5__prompt"

WS_KVF, WS_HF, WS_OF = 0x0000, 0x2000, 0x3000
WS_E, E_BYTES = 0x10000, 22 * 640 * 8
WS_KV, KV_BYTES = 0x40000, 32 * 5376
WS_O = 0x100000
WS_H, WS_END = 0x400000, 0x900000
WS_DIAG = 0x1000000
X_BYTES, W_BYTES, OUT_BYTES = 2048 * 1280, 640 * 1280, 2048 * 5120
FAR = 0x7FFF0000
SPIN = 40000

P_AX, P_WQ, P_WK, P_WV, P_WO, P_BX, P_LRE, P_LIM = 4, 6, 8, 10, 12, 14, 16, 18
P_BRE, P_BIM, P_CRE, P_CIM, P_LDT, P_DSK, P_OUT, P_DBG, P_WS = 20, 22, 24, 26, 28, 30, 32, 34, 36
S_W, S_T = 38, 39
RA, RB, RC, RW, RD = 40, 44, 48, 52, 56
S_X, S_S = 60, 61

LANE, SW0, SW1, L16 = 255, 254, 253, 248
FR = [249, 250, 251, 252]

LOG2E = 1.4426950408889634
QSCALE = 20 ** -0.5 * LOG2E
SAFE_BOUND = 64.0


def fbits(x):
    return "0x%08x" % struct.unpack("<I", struct.pack("<f", x))[0]


class Gen:
    def __init__(self, diag=False, opts=None):
        self.a = Asm()
        self.diag = diag
        self.o = dict(opts or {})
        self.uid = 0

    def lab(self, base):
        self.uid += 1
        return f"L_{base}_{self.uid}"

    def srd(self, r, ptr, nbytes, add=0):
        a = self.a
        if add:
            a(f"s_add_u32 s{r}, s{ptr}, {add:#x}\ns_addc_u32 s{r+1}, s{ptr+1}, 0")
        else:
            a(f"s_mov_b32 s{r}, s{ptr}\ns_mov_b32 s{r+1}, s{ptr+1}")
        a(f"s_mov_b32 s{r+2}, {nbytes:#x}\ns_mov_b32 s{r+3}, 0x20000")

    def stamp(self, n):
        if self.o.get("probe") == (self.role, n):
            self.a("s_memrealtime s[78:79]\ns_waitcnt lgkmcnt(0)\ns_mov_b32 s81, s78")
        if self.o.get("probe") == (self.role + "clk", n):
            self.a("s_memtime s[78:79]\ns_waitcnt lgkmcnt(0)\ns_sub_u32 s81, s78, s80\ns_lshr_b32 s81, s81, 5\ns_add_u32 s81, s81, s99")
        if self.diag:
            self.a(f"s_memtime s[78:79]\ns_waitcnt lgkmcnt(0)\ns_mov_b32 s{80+n}, s78")

    def dma(self, vaddr, srd, soff, off=0, sc1=False):
        o = f" offset:{off}" if off else ""
        self.a(f"buffer_load_dwordx4 v{vaddr}, {sr(srd,4)}, {soff} offen{o}{' sc1' if sc1 else ''} lds")

    def lanes(self):
        self.a(f"""
        v_lshrrev_b32 v1, 6, v0
        v_and_b32 v{LANE}, 63, v0
        s_and_b32 s{S_X}, s2, 7
        v_readfirstlane_b32 s{S_W}, v1
        s_bfe_u32 s{S_S}, s2, 0x50003
        v_lshrrev_b32 v1, 3, v{LANE}
        v_lshrrev_b32 v2, 4, v{LANE}
        v_and_b32 v3, 7, v{LANE}
        v_mul_u32_u24 v1, 1280, v1
        v_xor_b32 v3, v3, v2
        v_lshl_add_u32 v{SW0}, v3, 4, v1
        v_lshlrev_b32 v{L16}, 4, v{LANE}
        v_xor_b32 v{SW1}, 64, v{SW0}
        v_add_u32 v{SW1}, 9216, v{SW1}
        """)

    def frag_lanes(self):
        self.a(f"""
        v_and_b32 v1, 31, v{LANE}
        v_lshrrev_b32 v2, 5, v{LANE}
        v_bfe_u32 v3, v{LANE}, 1, 3
        v_xor_b32 v2, v2, v3
        v_lshlrev_b32 v1, 7, v1
        v_lshl_add_u32 v{FR[0]}, v2, 4, v1
        v_xor_b32 v{FR[1]}, 32, v{FR[0]}
        v_xor_b32 v{FR[2]}, 64, v{FR[0]}
        v_xor_b32 v{FR[3]}, 0x60, v{FR[0]}
        """)

    def tr_lanes(self, dst, stride):
        self.a(f"""
        v_lshrrev_b32 v1, 5, v{LANE}
        v_bfe_u32 v2, v{LANE}, 2, 2
        v_lshl_add_u32 v1, v1, 3, v2
        v_mul_u32_u24 v1, {stride}, v1
        v_and_b32 v2, 19, v{LANE}
        v_min_u32 v2, 4, v2
        v_lshl_add_u32 v{dst}, v2, 3, v1
        """)

    def w160_lanes(self, regs):
        for i, r in enumerate(regs):
            comp = 1024 * i if i < 4 else 0
            self.a(f"""
            v_add_u32 v1, {64*i}, v{LANE}
            v_mul_u32_u24 v2, 6554, v1
            v_lshrrev_b32 v2, 16, v2
            v_mul_u32_u24 v2, 1120, v2
            v_lshl_add_u32 v{r}, v1, 4, v2
            """)
            if comp:
                self.a(f"v_subrev_u32 v{r}, {comp}, v{r}")

    def poll(self, vaddr, srd, soff, vdata, width, check, sleep=0):
        l, d = self.lab("poll"), self.lab("polled")
        op = {1: "dword", 2: "dwordx2"}[width]
        self.a(f"""
        s_mov_b32 s{S_T}, {SPIN}
        {l}:
        buffer_load_{op} {vr(vdata,width)}, v{vaddr}, {sr(srd,4)}, {soff} offen sc1
        s_sub_u32 s{S_T}, s{S_T}, 1
        s_cbranch_scc1 {d}
        s_waitcnt vmcnt(0)
        """)
        check()
        self.a(f"s_cbranch_vccz {d}")
        if sleep:
            self.a(f"s_sleep {sleep}")
        self.a(f"s_branch {l}\n{d}:\ns_waitcnt vmcnt(0)")

    def poll_eq(self, srd, soff, value, sleep=0, va=1, vd=2):
        self.a(f"s_mov_b64 exec, 1\nv_mov_b32 v{va}, 0")
        self.poll(va, srd, soff, vd, 1, lambda: self.a(f"v_cmp_gt_u32 vcc, {value}, v{vd}"), sleep)
        self.a("s_mov_b64 exec, -1")

    def signal_add(self, srd, soff, va=1, vd=2):
        self.a(f"""
        s_mov_b64 exec, 1
        v_mov_b32 v{va}, 0
        v_mov_b32 v{vd}, 1
        buffer_atomic_add v{vd}, v{va}, {sr(srd,4)}, {soff} offen
        s_mov_b64 exec, -1
        """)

    def finish_wave(self):
        a = self.a
        if "probe" in self.o:
            a("s_waitcnt vmcnt(0)")
            self.stamp(18)
            l = self.lab("probe")
            a(f"""
            s_sub_u32 s81, s81, s99
            s_lshl_b32 s81, s81, 2
            s_add_u32 s81, s81, 10000
            {l}:
            s_sleep 1
            s_memrealtime s[78:79]
            s_waitcnt lgkmcnt(0)
            s_sub_u32 s78, s78, s99
            s_cmp_lt_u32 s78, s81
            s_cbranch_scc1 {l}
            """)
        if self.diag:
            self.stamp(18)
            self.srd(RA, P_WS, 1 << 20, WS_DIAG)
            a("s_mov_b64 exec, -1\nv_mov_b32 v1, 0")
            for n in range(20):
                a(f"v_writelane_b32 v1, s{80+n}, {n}")
            a(f"""
            s_lshl_b32 s{S_T}, s2, 2
            s_add_u32 s{S_T}, s{S_T}, s{S_W}
            s_lshl_b32 s{S_T}, s{S_T}, 8
            v_lshlrev_b32 v2, 2, v{LANE}
            buffer_store_dword v1, v2, {sr(RA,4)}, s{S_T} offen
            """)
        a("s_endpgm")

    def entry(self):
        a = self.a
        a(f"""
        s_cmp_ge_u32 s2, 512
        s_cbranch_scc1 L_exit
        s_load_dwordx16 s[4:19], s[0:1], 0
        s_load_dwordx16 s[20:35], s[0:1], 64
        s_load_dwordx2 s[36:37], s[0:1], 128
        """)
        if "probe" in self.o:
            a("s_memtime s[78:79]\ns_memrealtime s[76:77]")
        if self.diag:
            a("s_memtime s[78:79]\ns_memrealtime s[76:77]")
            for n in range(1, 19):
                a(f"s_mov_b32 s{80+n}, 0")
        a("s_cmp_lt_u32 s2, 256\ns_cbranch_scc1 L_att")

    def after_kernarg(self):
        self.a("s_waitcnt lgkmcnt(0)")
        if self.diag or "probe" in self.o:
            self.a("s_mov_b32 s80, s78\ns_mov_b32 s99, s76")
        if "probe" in self.o:
            self.a("s_mov_b32 s81, s76")

    def kv_job(self):
        a = self.a
        CH, RED = 6656, 69632
        S_KT, S_WH, S_N, S_B, S_XO, S_WO_, S_I = 62, 63, 64, 65, 66, 67, 68
        XF, WF, AX, AW = 16, 32, 48, 52
        a(f"""
        s_cmp_ge_u32 s{S_S}, 16
        s_cbranch_scc1 L_kv_skip
        s_setprio 3
        s_lshr_b32 s{S_KT}, s{S_S}, 1
        s_lshl_b32 s{S_T}, s{S_X}, 3
        s_add_u32 s{S_KT}, s{S_KT}, s{S_T}
        s_and_b32 s{S_WH}, s{S_S}, 1
        s_cselect_b32 s{RB}, s{P_WV}, s{P_WK}
        s_cselect_b32 s{RB+1}, s{P_WV+1}, s{P_WK+1}
        s_mov_b32 s{RB+2}, 25600
        s_mov_b32 s{RB+3}, 0x20000
        """)
        self.srd(RA, P_AX, X_BYTES)
        a(f"""
        s_cmp_lt_u32 s{S_W}, 2
        s_cselect_b32 s{S_N}, 3, 2
        s_cselect_b32 s{S_T}, 8, 4
        s_add_u32 s{S_T}, s{S_T}, s{S_W}
        s_mul_i32 s{S_B}, s{S_T}, {CH}
        s_mul_i32 s{S_WO_}, s{S_T}, 2560
        s_lshl_b32 s{S_T}, s{S_T}, 7
        s_mul_i32 s{S_XO}, s{S_KT}, {32*1280}
        s_add_u32 s{S_XO}, s{S_XO}, s{S_T}
        s_mov_b32 s{S_I}, s{S_N}
        s_mov_b32 s69, s{S_B}
        L_kv_issue:
        s_mov_b32 m0, s69
        s_add_u32 s{S_T}, s{S_XO}, {16*1280-2048}
        """)
        self.dma(SW0, RA, f"s{S_XO}")
        self.dma(SW1, RA, f"s{S_XO}", 1024)
        self.dma(SW0, RA, f"s{S_T}", 2048)
        self.dma(SW1, RA, f"s{S_T}", 3072)
        a(f"s_add_u32 m0, s69, 4096\ns_sub_u32 s{S_XO}, s{S_XO}, 512")
        self.dma(L16, RB, f"s{S_WO_}")
        self.dma(L16, RB, f"s{S_WO_}", 1024)
        a("s_mov_b32 exec_hi, 0")
        self.dma(L16, RB, f"s{S_WO_}", 2048)
        a(f"""
        s_mov_b32 exec_hi, -1
        s_sub_u32 s{S_WO_}, s{S_WO_}, {4*2560}
        s_sub_u32 s69, s69, {4*CH}
        s_sub_u32 s{S_I}, s{S_I}, 1
        s_cmp_lg_u32 s{S_I}, 0
        s_cbranch_scc1 L_kv_issue
        """)
        self.frag_lanes()
        self.tr_lanes(AW, 40)
        for s in range(4):
            a(f"v_add_u32 v{AX+s}, s{S_B}, v{FR[s]}")
        a(f"s_add_u32 s{S_T}, s{S_B}, 4096\nv_add_u32 v{AW}, s{S_T}, v{AW}")
        for i in range(16):
            a(f"v_mov_b32 v{i}, 0")
        a(f"""
        L_kv_loop:
        s_waitcnt vmcnt(14)
        s_cmp_eq_u32 s{S_N}, 3
        s_cbranch_scc1 L_kv_go
        s_waitcnt vmcnt(7)
        s_cmp_eq_u32 s{S_N}, 2
        s_cbranch_scc1 L_kv_go
        s_waitcnt vmcnt(0)
        L_kv_go:
        """)
        for s in range(4):
            a(f"ds_read_b128 {vr(XF+4*s,4)}, v{AX+s}")
            for j in range(2):
                a(f"ds_read_b64_tr_b16 {vr(WF+4*s+2*j,2)}, v{AW} offset:{(16*s+4*j)*40}")
        for s in range(4):
            a(f"v_subrev_u32 v{AX+s}, {4*CH}, v{AX+s}")
        a(f"""
        v_subrev_u32 v{AW}, {4*CH}, v{AW}
        s_cmp_eq_u32 s{S_WH}, 1
        s_cbranch_scc1 L_kv_v
        """)
        for s in range(4):
            a(f"s_waitcnt lgkmcnt({9-3*s})")
            a(f"v_mfma_f32_32x32x16_bf16 v[0:15], {vr(WF+4*s,4)}, {vr(XF+4*s,4)}, v[0:15]")
        a("s_branch L_kv_next\nL_kv_v:")
        for s in range(4):
            a(f"s_waitcnt lgkmcnt({9-3*s})")
            a(f"v_mfma_f32_32x32x16_bf16 v[0:15], {vr(XF+4*s,4)}, {vr(WF+4*s,4)}, v[0:15]")
        a(f"""
        L_kv_next:
        s_sub_u32 s{S_N}, s{S_N}, 1
        s_cmp_lg_u32 s{S_N}, 0
        s_cbranch_scc1 L_kv_loop
        s_lshl_b32 s{S_T}, s{S_W}, 12
        s_add_u32 s{S_T}, s{S_T}, {RED-4096}
        v_add_u32 v{AX}, s{S_T}, v{L16}
        s_cmp_eq_u32 s{S_W}, 0
        s_cbranch_scc1 L_kv_w0
        s_nop 7
        """)
        for q in range(4):
            a(f"ds_write_b128 v{AX}, {vr(4*q,4)} offset:{1024*q}")
        a("s_waitcnt lgkmcnt(0)\ns_barrier\ns_branch L_kv_done\nL_kv_w0:\ns_barrier")
        for w in range(3):
            for q in range(4):
                a(f"ds_read_b128 {vr(56+16*w+4*q,4)}, v{AX} offset:{4096*(w+1)+1024*q}")
        self.srd(RA, P_WS, KV_BYTES, WS_KV)
        a(f"""
        s_lshr_b32 s64, s{S_KT}, 1
        s_mul_i32 s64, s64, 5376
        s_and_b32 s65, s{S_KT}, 1
        s_lshl_b32 s66, s{S_KT}, 7
        s_lshl_b32 s{S_T}, s{S_WH}, 2
        s_add_u32 s66, s66, s{S_T}
        v_mov_b32 v50, 0
        """)
        for w in range(3):
            a(f"s_waitcnt lgkmcnt({8-4*w})")
            for i in range(0, 16, 2):
                a(f"v_pk_add_f32 {vr(i,2)}, {vr(i,2)}, {vr(56+16*w+i,2)}")
        for i in range(8):
            a(f"v_cvt_pk_bf16_f32 v{16+i}, v{2*i}, v{2*i+1}")
        a(f"""
        s_cmp_eq_u32 s{S_WH}, 1
        s_cbranch_scc1 L_kv_stv
        v_and_b32 v24, 0x33, v{LANE}
        v_bfe_u32 v25, v{LANE}, 2, 1
        v_bfe_u32 v26, v{LANE}, 3, 1
        v_lshl_add_u32 v24, v25, 3, v24
        v_lshl_add_u32 v24, v26, 2, v24
        v_cmp_lt_u32 vcc, 31, v{LANE}
        v_lshlrev_b32 v25, 4, v24
        v_lshlrev_b32 v26, 2, v24
        s_lshl_b32 s67, s65, 10
        s_add_u32 s67, s67, s64
        s_lshl_b32 s68, s65, 8
        s_add_u32 s68, s68, s64
        v_cndmask_b32 v20, v20, v21, vcc
        buffer_store_dwordx4 v[16:19], v25, {sr(RA,4)}, s67 offen sc1
        buffer_store_dword v20, v26, {sr(RA,4)}, s68 offen offset:2048 sc1
        v_cndmask_b32 v8, v8, v10, vcc
        v_cndmask_b32 v9, v9, v11, vcc
        v_mul_f32 v30, v0, v0
        """)
        for i in range(1, 10):
            a(f"v_fmac_f32 v30, v{i}, v{i}")
        a("""
        v_mov_b32 v31, v30
        v_permlane32_swap_b32 v30, v31
        v_add_f32 v30, v30, v31
        v_max_f32_dpp v30, v30, v30 row_ror:8 row_mask:0xf bank_mask:0xf
        v_max_f32_dpp v30, v30, v30 row_ror:4 row_mask:0xf bank_mask:0xf
        v_max_f32_dpp v30, v30, v30 row_ror:2 row_mask:0xf bank_mask:0xf
        v_max_f32_dpp v30, v30, v30 row_ror:1 row_mask:0xf bank_mask:0xf
        v_mov_b32 v31, v30
        v_permlane16_swap_b32 v30, v31
        v_max_f32 v30, v30, v31
        v_or_b32 v30, 1, v30
        s_branch L_kv_flag
        L_kv_stv:
        """)
        a(f"""
        v_and_b32 v24, 31, v{LANE}
        v_lshrrev_b32 v25, 5, v{LANE}
        v_cmp_lt_u32 vcc, 19, v24
        v_mul_u32_u24 v25, 352, v25
        v_mov_b32 v26, 0x3f803f80
        v_lshl_add_u32 v25, v24, 4, v25
        s_mul_i32 s67, s65, 1408
        s_add_u32 s67, s67, s64
        """)
        for i in range(8):
            a(f"v_cndmask_b32 v{16+i}, v{16+i}, v26, vcc")
        a(f"""
        s_mov_b32 exec_lo, 0x3fffff
        s_mov_b32 exec_hi, 0x3fffff
        buffer_store_dwordx4 v[16:19], v25, {sr(RA,4)}, s67 offen offset:2560 sc1
        buffer_store_dwordx4 v[20:23], v25, {sr(RA,4)}, s67 offen offset:{2560+704} sc1
        s_mov_b64 exec, -1
        v_mov_b32 v30, 1
        L_kv_flag:
        """)
        self.stamp(1)
        self.poll_eq(RD, "0", 1, va=50, vd=51)
        a(f"""
        s_mov_b64 exec, 1
        buffer_store_dword v30, v50, {sr(RW,4)}, s66 offen sc1
        s_mov_b64 exec, -1
        """)
        self.stamp(2)
        a("""
        L_kv_done:
        s_setprio 0
        s_branch L_kv_end
        L_kv_skip:
        """)
        self.frag_lanes()
        a(f"""
        s_cmp_lg_u32 s2, 511
        s_cbranch_scc1 L_kv_end
        s_cmp_lg_u32 s{S_W}, 0
        s_cbranch_scc1 L_kv_end
        v_lshlrev_b32 v1, 7, v{LANE}
        v_mov_b32 v2, 0
        v_mov_b32 v3, 0
        s_movk_i32 s{S_T}, 0x2000
        buffer_store_dwordx2 v[2:3], v1, {sr(RW,4)}, 0 offen sc1
        buffer_store_dwordx2 v[2:3], v1, {sr(RW,4)}, s{S_T} offen sc1
        v_mov_b32 v4, 1
        s_waitcnt vmcnt(0)
        s_mov_b64 exec, 1
        buffer_store_dword v4, v2, {sr(RD,4)}, 0 offen sc1
        s_mov_b64 exec, -1
        L_kv_end:
        """)

    def cpow(self, dst, n, va, vb, t):
        self.a(f"""
        v_mul_f32 v{t}, {n}, v{va}
        v_mul_f32 v{t+1}, {n}, v{vb}
        v_exp_f32 v{t}, v{t}
        v_fract_f32 v{t+1}, v{t+1}
        v_cos_f32 v{dst}, v{t+1}
        v_sin_f32 v{dst+1}, v{t+1}
        v_mul_f32 v{dst}, v{t}, v{dst}
        v_mul_f32 v{dst+1}, v{t}, v{dst+1}
        """)

    def cmad(self, dr, di, l, xr, xi, cr, ci):
        self.a(f"""
        v_fma_f32 v{dr}, v{l}, v{xr}, {cr}
        v_fma_f32 v{di}, v{l}, v{xi}, {ci}
        v_fma_f32 v{dr}, -v{l+1}, v{xi}, v{dr}
        v_fma_f32 v{di}, v{l+1}, v{xr}, v{di}
        """)

    def pkstep(self, dr, di, pr, pi, ur, ui, l, conj=False):
        lo = "op_sel:[0,0,0] op_sel_hi:[1,0,1]"
        hi = "op_sel:[0,1,0] op_sel_hi:[1,1,1]"
        neg = " neg_lo:[0,1,0] neg_hi:[0,1,0]"
        self.a(f"""
        v_pk_fma_f32 {vr(dr,2)}, {vr(pr,2)}, {vr(l,2)}, {vr(ur,2)} {lo}
        v_pk_fma_f32 {vr(di,2)}, {vr(pi,2)}, {vr(l,2)}, {vr(ui,2)} {lo}
        v_pk_fma_f32 {vr(dr,2)}, {vr(pi,2)}, {vr(l,2)}, {vr(dr,2)} {hi}{'' if conj else neg}
        v_pk_fma_f32 {vr(di,2)}, {vr(pr,2)}, {vr(l,2)}, {vr(di,2)} {hi}{neg if conj else ''}
        """)

    def u_job(self):
        a = self.a
        S_TB, S_CG, S_XO, S_BO, S_XM, S_BM = 62, 63, 64, 65, 66, 67
        XRING, BRING = 0, 36864
        D = [0, 16, 32]
        BF, XF = 48, 64
        VX, AXU, AB = 112, 116, 120
        PL = 124
        a(f"""
        s_lshr_b32 s70, s{S_X}, 1
        s_cmp_lt_u32 s70, 2
        s_cselect_b32 s71, 30, 25
        s_sub_u32 s72, 31, s{S_S}
        s_cmp_ge_u32 s72, s71
        s_cbranch_scc1 L_u_idle
        s_lshl_b32 s70, s70, 3
        s_lshr_b32 s{S_TB}, 0x110c0600, s70
        s_and_b32 s{S_TB}, s{S_TB}, 0xff
        s_mul_i32 s70, s72, 52
        s_lshr_b32 s70, s70, 8
        s_add_u32 s{S_TB}, s{S_TB}, s70
        s_mul_i32 s70, s70, 5
        s_sub_u32 s72, s72, s70
        s_and_b32 s70, s{S_X}, 1
        s_mul_i32 s70, s70, 5
        s_add_u32 s{S_CG}, s72, s70
        s_lshl_b32 s{S_CG}, s{S_CG}, 2
        s_add_u32 s{S_CG}, s{S_CG}, s{S_W}
        """)
        a(f"""
        v_and_b32 v1, 15, v{LANE}
        v_lshlrev_b32 v1, 1, v1
        s_lshl_b32 s70, s{S_CG}, 5
        v_add_u32 v1, s70, v1
        global_load_ushort v{PL}, v1, s[{P_LRE}:{P_LRE+1}]
        global_load_ushort v{PL+1}, v1, s[{P_LIM}:{P_LIM+1}]
        global_load_ushort v{PL+2}, v1, s[{P_LDT}:{P_LDT+1}]
        """)
        self.srd(RA, P_BX, X_BYTES)
        self.srd(RB, P_BRE, W_BYTES)
        self.srd(RC, P_BIM, W_BYTES)
        a(f"""
        s_and_b32 s70, s{S_W}, 1
        s_lshr_b32 s71, s{S_W}, 1
        s_mul_i32 s71, s71, 24
        s_lshl_b32 s72, s70, 1
        s_add_u32 s71, s71, s72
        s_mul_i32 s72, s{S_TB}, 96
        s_add_u32 s71, s71, s72
        s_mul_i32 s{S_XO}, s71, 1280
        s_mul_i32 s{S_BO}, s{S_CG}, {16*1280}
        s_mul_i32 s{S_XM}, s{S_W}, 3072
        s_lshl_b32 s{S_BM}, s{S_W}, 13
        s_add_u32 s{S_BM}, s{S_BM}, {BRING}
        s_lshl_b32 s70, s70, 6
        v_lshrrev_b32 v1, 5, v{LANE}
        v_bfe_u32 v2, v{LANE}, 3, 1
        v_bfe_u32 v3, v{LANE}, 4, 1
        v_mul_u32_u24 v1, 48, v1
        v_mul_u32_u24 v2, 12, v2
        v_add3_u32 v1, v1, v2, v3
        v_mul_u32_u24 v1, 1280, v1
        v_and_b32 v2, 0x70, v{SW0}
        v_xor_b32 v2, s70, v2
        v_add_u32 v{VX}, v1, v2
        """)
        q = VMQ()
        q.push("par", 3)

        def issue_x(c):
            a(f"s_add_u32 m0, s{S_XM}, {XRING + (c % 3) * 12288}")
            for m in range(3):
                a(f"s_add_u32 s70, s{S_XO}, {128*c + 4096*m}")
                self.dma(VX, RA, "s70", 1024 * m)
            q.push(("c", c), 3)

        def issue_b(c):
            a(f"s_add_u32 m0, s{S_BM}, {(c & 1) * 4096}\ns_add_u32 s70, s{S_BO}, {128*c}")
            self.dma(SW0, RB, "s70")
            self.dma(SW1, RB, "s70", 1024)
            a(f"s_add_u32 m0, s{S_BM}, {(c & 1) * 4096 + 2048}")
            self.dma(SW0, RC, "s70")
            self.dma(SW1, RC, "s70", 1024)
            q.push(("c", c), 4)

        for c in range(2):
            issue_x(c)
            issue_b(c)
        a(f"v_bfe_u32 v1, v{LANE}, 3, 2\nv_lshlrev_b32 v1, 11, v1")
        for s in range(4):
            a(f"v_add_u32 v{AXU+s}, v1, v{FR[s]}\nv_add_u32 v{AB+s}, s{S_BM}, v{FR[s]}")
        LA, LB, T = 128, 129, 130
        L1, L12, L24, LRHO, ARHO, A4, CF = 132, 134, 136, 138, 140, 142, 144
        a(f"s_waitcnt vmcnt({q.cover('par')})")
        a(f"""
        v_lshlrev_b32 v{PL}, 16, v{PL}
        v_lshlrev_b32 v{PL+1}, 16, v{PL+1}
        v_lshlrev_b32 v{PL+2}, 16, v{PL+2}
        v_mul_f32 v{PL+2}, {fbits(LOG2E)}, v{PL+2}
        v_exp_f32 v{PL+2}, v{PL+2}
        v_lshrrev_b32 v{PL+3}, 4, v{LANE}
        v_cvt_pk_bf16_f32 v{PL+2}, v{PL+2}, v{PL+2}
        v_cvt_f32_u32 v{PL+3}, v{PL+3}
        v_lshlrev_b32 v{PL+2}, 16, v{PL+2}
        v_mul_f32 v{LA}, v{PL+2}, v{PL}
        v_mul_f32 v{LB}, v{PL+2}, v{PL+1}
        v_mul_f32 v{LA}, {fbits(LOG2E)}, v{LA}
        v_mul_f32 v{LB}, {fbits(1/(2*math.pi))}, v{LB}
        """)
        self.cpow(L1, "1.0", LA, LB, T)
        self.cpow(L12, fbits(12.0), LA, LB, T)
        self.cpow(L24, fbits(24.0), LA, LB, T)
        self.cpow(A4, fbits(384.0), LA, LB, T)
        a(f"v_mul_f32 v{PL+3}, {fbits(24.0)}, v{PL+3}")
        self.cpow(LRHO, f"v{PL+3}", LA, LB, T)
        a(f"v_mul_f32 v{PL+3}, 4.0, v{PL+3}")
        self.cpow(ARHO, f"v{PL+3}", LA, LB, T)
        a(f"""
        v_mul_f32 v{T}, v{PL}, v{PL}
        v_fmac_f32 v{T}, v{PL+1}, v{PL+1}
        v_rcp_f32 v{T}, v{T}
        v_add_f32 v{T+1}, -1.0, v{L1}
        v_mul_f32 v{CF}, v{T+1}, v{PL}
        v_mul_f32 v{CF+1}, v{L1+1}, v{PL}
        v_add_f32 v{T}, v{T}, v{T}
        v_fmac_f32 v{CF}, v{L1+1}, v{PL+1}
        v_fma_f32 v{CF+1}, -v{T+1}, v{PL+1}, v{CF+1}
        v_mul_f32 v{CF}, v{T}, v{CF}
        v_mul_f32 v{CF+1}, v{T}, v{CF+1}
        """)
        self.stamp(3)
        for c in range(10):
            a(f"s_waitcnt vmcnt({q.cover(('c', c))})\ns_barrier")
            xo, bo = XRING + (c % 3) * 12288, (c & 1) * 4096
            for s in range(4):
                a(f"ds_read_b128 {vr(BF+4*s,4)}, v{AB+s} offset:{bo}")
            for s in range(2):
                for m in range(3):
                    a(f"ds_read_b128 {vr(XF+12*s+4*m,4)}, v{AXU+s} offset:{xo+1024*m}")
            if c + 2 < 10:
                issue_x(c + 2)
            a("s_waitcnt lgkmcnt(3)")
            if c + 2 < 10:
                issue_b(c + 2)
            for s in range(4):
                if s:
                    a(f"s_waitcnt lgkmcnt({3 if s < 3 else 0})")
                for m in range(3):
                    cin = "0" if c == 0 and s == 0 else vr(D[m], 16)
                    a(f"v_mfma_f32_32x32x16_bf16 {vr(D[m],16)}, {vr(XF+12*s+4*m,4)}, {vr(BF+4*s,4)}, {cin}")
                    if s < 2:
                        a(f"ds_read_b128 {vr(XF+12*(s+2)+4*m,4)}, v{AXU+s+2} offset:{xo+1024*m}")
        self.stamp(4)
        DA, DE, DV = 146, 147, 148
        a(f"""
        v_and_b32 v{DE}, 1, v{LANE}
        v_lshlrev_b32 v{DA}, 7, v{DE}
        v_mul_u32_u24 v{DE}, 35, v{DE}
        v_add_u32 v{DE}, 1, v{DE}
        buffer_load_dword v{DV}, v{DA}, {sr(RD,4)}, 0 offen sc1
        """)
        for m in range(3):
            for r in range(8):
                a(f"v_permlane16_swap_b32 v{D[m]+r}, v{D[m]+8+r}")
        ur = lambda i: D[i >> 2] + 2 * (i & 3)
        ui = lambda i: ur(i) + 8
        PA = [(48, 50), (52, 54)]
        pr, pi = ur(0), ui(0)
        for i in range(1, 12):
            dr, di = PA[i & 1]
            self.pkstep(dr, di, pr, pi, ur(i), ui(i), L1)
            pr, pi = dr, di
        EA_R, EA_I, EB_R, EB_I = pr, pi, pr + 1, pi + 1
        G = 56
        self.cmad(G, G + 4, L12, EA_R, EA_I, f"v{EB_R}", f"v{EB_I}")
        for b in (G, G + 4):
            a(f"""
            v_mov_b32 v{b+1}, v{b}
            v_permlane16_swap_b32 v{b}, v{b+1}
            v_mov_b32 v{b+2}, v{b}
            v_mov_b32 v{b+3}, v{b+1}
            v_permlane32_swap_b32 v{b}, v{b+2}
            v_permlane32_swap_b32 v{b+1}, v{b+3}
            """)
        P2, P3, EE, PP = 64, 66, 68, 70
        self.cmad(P2, P2 + 1, L24, G, G + 4, f"v{G+1}", f"v{G+5}")
        self.cmad(P3, P3 + 1, L24, P2, P2 + 1, f"v{G+2}", f"v{G+6}")
        self.cmad(EE, EE + 1, L24, P3, P3 + 1, f"v{G+3}", f"v{G+7}")
        EO, EV = 72, 80
        a(f"""
        v_or_b32 v{EE}, 1, v{EE}
        v_or_b32 v{EE+1}, 1, v{EE+1}
        v_and_b32 v{T}, 15, v{LANE}
        v_lshlrev_b32 v{T}, 3, v{T}
        s_mul_i32 s70, s{S_TB}, 5120
        s_lshl_b32 s71, s{S_CG}, 7
        s_add_u32 s71, s71, {WS_E}
        s_add_u32 s70, s70, s71
        s_waitcnt vmcnt(0)
        v_cmp_lt_u32 vcc, v{DV}, v{DE}
        s_cbranch_vccz L_u_ready
        """)
        self.poll(DA, RD, "0", DV, 1, lambda: a(f"v_cmp_lt_u32 vcc, v{DV}, v{DE}"), sleep=8)
        a(f"""
        L_u_ready:
        s_mov_b64 exec, 0xffff
        buffer_store_dwordx2 {vr(EE,2)}, v{T}, {sr(RW,4)}, s70 offen sc1
        s_mov_b64 exec, -1
        v_mov_b32 v{PP}, 0
        v_mov_b32 v{PP+1}, 0
        v_lshrrev_b32 v{T+1}, 4, v{LANE}
        s_sub_u32 s72, s{S_TB}, 1
        v_sub_u32 v{T+1}, s72, v{T+1}
        v_mov_b32 v{EV}, {FAR:#x}
        """)
        for src, mask in (((G, G + 4), 2), ((P2, P2 + 1), 4), ((P3, P3 + 1), 8)):
            for k in range(2):
                a(f"v_mov_b32_dpp v{PP+k}, v{src[k]} quad_perm:[0,1,2,3] row_mask:{mask:#x} bank_mask:0xf")
        for i in range(6):
            a(f"""
            v_cmp_le_i32 vcc, {4*i}, v{T+1}
            v_subrev_u32 v{EV+1}, {4*i}, v{T+1}
            v_mul_u32_u24 v{EV+1}, 5120, v{EV+1}
            v_add_u32 v{EV+1}, v{EV+1}, v{T}
            v_cndmask_b32 v{EO+i}, v{EV}, v{EV+1}, vcc
            v_lshrrev_b32 v{106+i}, 30, v{EO+i}
            """)
        lo = "op_sel:[0,0] op_sel_hi:[1,0]"
        hi3 = "op_sel:[0,1,0] op_sel_hi:[1,1,1]"
        lo3 = "op_sel:[0,0,0] op_sel_hi:[1,0,1]"
        for i in range(12):
            t = 92 + 4 * (i & 1)
            a(f"""
            v_pk_mul_f32 {vr(t,2)}, {vr(ur(i),2)}, {vr(CF,2)} op_sel:[0,1] op_sel_hi:[1,1]
            v_pk_mul_f32 {vr(ur(i),2)}, {vr(ur(i),2)}, {vr(CF,2)} {lo}
            v_pk_fma_f32 {vr(ur(i),2)}, {vr(ui(i),2)}, {vr(CF,2)}, {vr(ur(i),2)} {hi3} neg_lo:[0,1,0] neg_hi:[0,1,0]
            v_pk_fma_f32 {vr(ui(i),2)}, {vr(ui(i),2)}, {vr(CF,2)}, {vr(t,2)} {lo3} neg_lo:[0,1,1] neg_hi:[0,1,1]
            """)
        self.stamp(5)
        l, d = self.lab("epoll"), self.lab("epolled")
        a(f"s_mov_b32 s{S_T}, {SPIN}\n{l}:")
        for i in range(6):
            a(f"buffer_load_dwordx2 {vr(EV+2*i,2)}, v{EO+i}, {sr(RW,4)}, s71 offen sc1")
        a(f"s_sub_u32 s{S_T}, s{S_T}, 1\ns_cbranch_scc1 {d}\ns_waitcnt vmcnt(0)")
        for i in range(6):
            a(f"v_and_or_b32 v{92+i}, v{EV+2*i}, v{EV+2*i+1}, v{106+i}")
        a(f"""
        v_bitop3_b32 v92, v92, v93, v94 bitop3:0x80
        v_bitop3_b32 v95, v95, v96, v97 bitop3:0x80
        v_bitop3_b32 v92, v92, v95, 1 bitop3:0x80
        v_cmp_eq_u32 vcc, 0, v92
        s_cbranch_vccz {d}
        s_sleep 6
        s_branch {l}
        {d}:
        s_waitcnt vmcnt(0)
        """)
        self.stamp(6)
        xr, xi = EV + 10, EV + 11
        for n, i in enumerate((4, 3, 2, 1, 0)):
            t = 92 + 2 * (n & 1)
            self.cmad(t, t + 1, A4, xr, xi, f"v{EV+2*i}", f"v{EV+2*i+1}")
            xr, xi = t, t + 1
        self.cmad(96, 98, ARHO, xr, xi, "0", "0")
        for sw in ("v_permlane16_swap_b32", "v_permlane32_swap_b32"):
            a(f"""
            v_mov_b32 v97, v96
            v_mov_b32 v99, v98
            {sw} v96, v97
            {sw} v98, v99
            v_add_f32 v96, v96, v97
            v_add_f32 v98, v98, v99
            """)
        SR_, SI_ = 100, 102
        self.cmad(SR_, SI_, LRHO, 96, 98, f"v{PP}", f"v{PP+1}")
        self.cmad(SR_ + 1, SI_ + 1, L12, SR_, SI_, f"v{EA_R}", f"v{EA_I}")
        a(f"""
        v_pk_mul_f32 v[92:93], {vr(SR_,2)}, {vr(CF,2)} op_sel:[0,1] op_sel_hi:[1,1]
        v_pk_mul_f32 {vr(SR_,2)}, {vr(SR_,2)}, {vr(CF,2)} {lo}
        v_pk_fma_f32 {vr(SR_,2)}, {vr(SI_,2)}, {vr(CF,2)}, {vr(SR_,2)} {hi3} neg_lo:[0,1,0] neg_hi:[0,1,0]
        v_pk_fma_f32 {vr(SI_,2)}, {vr(SI_,2)}, {vr(CF,2)}, v[92:93] {lo3} neg_lo:[0,1,1] neg_hi:[0,1,1]
        """)
        pr, pi = SR_, SI_
        for i in range(12):
            self.pkstep(ur(i), ui(i), pr, pi, ur(i), ui(i), L1, conj=True)
            pr, pi = ur(i), ui(i)
        HB, AH = 48, 104
        a(f"""
        v_and_b32 v{AH}, 15, v{LANE}
        v_lshrrev_b32 v{AH+1}, 4, v{LANE}
        v_mul_u32_u24 v{AH}, 208, v{AH}
        v_mul_u32_u24 v{AH+1}, 48, v{AH+1}
        v_add3_u32 v{AH}, v{AH}, v{AH+1}, s{S_BM}
        v_lshrrev_b32 v{AH+1}, 5, v{LANE}
        v_bfe_u32 v{AH+2}, v{LANE}, 2, 2
        v_lshl_add_u32 v{AH+1}, v{AH+1}, 3, v{AH+2}
        v_mul_u32_u24 v{AH+1}, 208, v{AH+1}
        v_bfe_u32 v{AH+2}, v{LANE}, 4, 1
        v_and_b32 v{AH+3}, 3, v{LANE}
        v_lshl_add_u32 v{AH+2}, v{AH+2}, 2, v{AH+3}
        v_lshlrev_b32 v{AH+2}, 3, v{AH+2}
        v_add3_u32 v{AH+1}, v{AH+1}, v{AH+2}, s{S_BM}
        """)
        for part, f in enumerate((ur, ui)):
            for n in range(12):
                seg, i = n // 6, 2 * (n % 6)
                a(f"v_cvt_pk_bf16_f32 v{HB+12*part+n}, v{f(i)+seg}, v{f(i+1)+seg}")
            for k in range(3):
                a(f"ds_write_b128 v{AH}, {vr(HB+12*part+4*k,4)} offset:{3328*part+16*k}")
        a(f"""
        s_mul_i32 s70, s{S_TB}, {3*80*1024}
        s_lshl_b32 s71, s{S_CG}, 10
        s_add_u32 s70, s70, s71
        s_add_u32 s70, s70, {WS_H}
        s_waitcnt lgkmcnt(0)
        """)
        for n in range(6):
            tau, part = n >> 1, n & 1
            for jj in range(2):
                a(f"ds_read_b64_tr_b16 {vr(4*n+2*jj,2)}, v{AH+1} offset:{3328*part+832*jj+64*tau}")
        for n in range(6):
            a(f"s_add_u32 s71, s70, {n*40*1024}\ns_waitcnt lgkmcnt({10-2*n})")
            a(f"buffer_store_dwordx4 {vr(4*n,4)}, v{L16}, {sr(RW,4)}, s71 offen sc1")
        a(f"""
        s_lshl_b32 s70, s{S_TB}, 7
        s_add_u32 s70, s70, {WS_HF}
        s_waitcnt vmcnt(0)
        s_barrier
        s_cmp_lg_u32 s{S_W}, 0
        s_cbranch_scc1 L_u_end
        """)
        self.signal_add(RW, "s70")
        a(f"""
        s_branch L_u_end
        L_u_idle:
        s_lshl_b32 s70, s{S_X}, 1
        s_mul_i32 s71, s{S_X}, 7
        s_sub_u32 s71, s71, 20
        s_cmp_lt_u32 s{S_X}, 4
        s_cselect_b32 s70, s70, s71
        s_add_u32 s70, s70, s{S_S}
        s_lshl_b32 s70, s70, 2
        s_add_u32 s70, s70, s{S_W}
        s_lshl_b32 s70, s70, 10
        """)
        self.srd(RA, P_WS, E_BYTES, WS_E)
        a(f"""
        v_mov_b32 v4, 0
        v_mov_b32 v5, 0
        v_mov_b32 v6, 0
        v_mov_b32 v7, 0
        buffer_store_dwordx4 v[4:7], v{L16}, {sr(RA,4)}, s70 offen sc1
        s_movk_i32 s70, 128
        s_waitcnt vmcnt(0)
        s_barrier
        s_cmp_lg_u32 s{S_W}, 0
        s_cbranch_scc1 L_u_end
        """)
        self.signal_add(RD, "s70")
        a("L_u_end:")
        self.stamp(7)

    def y_job(self):
        a = self.a
        S_KT, S_CY, S_CO, S_M = 62, 63, 64, 65
        ACC = [0, 16, 32, 48, 64]
        HF, CFR, AC = 80, 160, 192
        XD, DK = 196, 206
        a(f"""
        s_lshr_b32 s{S_KT}, s{S_S}, 2
        s_lshl_b32 s70, s{S_X}, 3
        s_add_u32 s{S_KT}, s{S_KT}, s70
        s_and_b32 s{S_CY}, s{S_S}, 3
        s_cmp_lt_u32 s{S_W}, 2
        s_cselect_b32 s{RA}, s{P_CRE}, s{P_CIM}
        s_cselect_b32 s{RA+1}, s{P_CRE+1}, s{P_CIM+1}
        s_mov_b32 s{RA+2}, {W_BYTES}
        s_mov_b32 s{RA+3}, 0x20000
        s_mul_i32 s{S_CO}, s{S_CY}, {160*1280}
        s_and_b32 s70, s{S_W}, 1
        s_mul_i32 s70, s70, 640
        s_add_u32 s{S_CO}, s{S_CO}, s70
        s_mul_i32 s{S_M}, s{S_W}, 20480
        """)
        q = VMQ()

        def issue(c, ct):
            o = ct * 32 * 1280 + 128 * c
            a(f"s_add_u32 m0, s{S_M}, {4096*ct}\ns_add_u32 s70, s{S_CO}, {o}\ns_add_u32 s71, s{S_CO}, {o+16*1280-2048}")
            self.dma(SW0, RA, "s70")
            self.dma(SW1, RA, "s70", 1024)
            self.dma(SW0, RA, "s71", 2048)
            self.dma(SW1, RA, "s71", 3072)
            q.push((c, ct), 4)

        for ct in range(5):
            issue(0, ct)
        self.srd(RB, P_BX, X_BYTES)
        self.srd(RC, P_OUT, OUT_BYTES)
        for s in range(4):
            a(f"v_add_u32 v{AC+s}, s{S_M}, v{FR[s]}")
        a(f"""
        v_lshrrev_b32 v1, 3, v{LANE}
        v_and_b32 v2, 7, v{LANE}
        v_mul_u32_u24 v1, 1280, v1
        v_lshlrev_b32 v2, 3, v2
        s_lshl_b32 s70, s{S_KT}, 2
        s_add_u32 s70, s70, s{S_W}
        s_mul_i32 s70, s70, {8*1280}
        s_mul_i32 s71, s{S_CY}, 320
        s_add_u32 s70, s70, s71
        v_add_u32 v1, v1, v2
        v_add_u32 v2, s71, v2
        """)
        for ct in range(5):
            a(f"buffer_load_dwordx2 {vr(XD+2*ct,2)}, v1, {sr(RB,4)}, s70 offen offset:{64*ct}")
            a(f"global_load_dwordx2 {vr(DK+2*ct,2)}, v2, s[{P_DSK}:{P_DSK+1}] offset:{64*ct}")
        q.push("skip", 10)
        a(f"""
        s_cmp_lg_u32 s{S_W}, 0
        s_cbranch_scc1 L_y_go
        s_mul_i32 s70, s{S_KT}, 43
        s_lshr_b32 s70, s70, 7
        s_lshl_b32 s70, s70, 7
        s_add_u32 s70, s70, {WS_HF}
        """)
        self.poll_eq(RW, "s70", 10, sleep=6)
        a(f"""
        L_y_go:
        s_mul_i32 s72, s{S_KT}, {80*1024}
        s_add_u32 s72, s72, s{S_M}
        s_add_u32 s72, s72, {WS_H}
        s_barrier
        """)
        self.stamp(8)
        for n in range(20):
            if n % 4 == 0 and n:
                a("s_add_u32 s72, s72, 4096")
            o = f" offset:{1024*(n%4)}" if n % 4 else ""
            a(f"buffer_load_dwordx4 {vr(HF+4*n,4)}, v{L16}, {sr(RW,4)}, s72 offen{o} sc1")
            q.push(("h", n // 4))
        units = [(c, ct) for c in range(5) for ct in range(5)]

        def wait(*tags):
            ns = [n for n in (q.cover(t) for t in tags) if n is not None]
            if ns:
                a(f"s_waitcnt vmcnt({min(ns)})")

        def reads(i):
            c, ct = units[i]
            wait((c, ct))
            for s in range(4):
                a(f"ds_read_b128 {vr(CFR+16*(i&1)+4*s,4)}, v{AC+s} offset:{4096*ct}")

        reads(0)
        for i, (c, ct) in enumerate(units):
            a("s_waitcnt lgkmcnt(0)")
            if c < 4:
                issue(c + 1, ct)
            if i + 1 < 25:
                reads(i + 1)
            wait(("h", c))
            for s in range(4):
                cin = "0" if c == 0 and s == 0 else vr(ACC[ct], 16)
                a(f"v_mfma_f32_32x32x16_bf16 {vr(ACC[ct],16)}, {vr(CFR+16*(i&1)+4*s,4)}, {vr(HF+16*c+4*s,4)}, {cin}")
        self.stamp(9)
        AWR, ARD, AST = 160, 164, 165
        a(f"""
        v_and_b32 v{ARD}, 31, v{LANE}
        v_lshrrev_b32 v{AST}, 5, v{LANE}
        v_and_b32 v{AWR}, 7, v{LANE}
        v_mul_u32_u24 v{ARD}, 640, v{ARD}
        v_xor_b32 v{AWR}, v{AWR}, v{AST}
        v_lshlrev_b32 v{AWR}, 4, v{AWR}
        v_add3_u32 v{AWR}, v{AWR}, v{ARD}, s{S_M}
        v_xor_b32 v{AWR+1}, 32, v{AWR}
        v_xor_b32 v{AWR+2}, 64, v{AWR}
        v_xor_b32 v{AWR+3}, 0x60, v{AWR}
        """)
        for ct in range(5):
            for g in range(4):
                a(f"ds_write_b128 v{AWR+g}, {vr(ACC[ct]+4*g,4)} offset:{128*ct}")
        a(f"""
        v_lshrrev_b32 v{AST}, 3, v{LANE}
        v_and_b32 v{AST+1}, 7, v{LANE}
        v_xor_b32 v{ARD}, v{AST}, v{AST+1}
        v_mul_u32_u24 v{AST+2}, 640, v{AST}
        v_lshl_add_u32 v{ARD}, v{ARD}, 4, v{AST+2}
        s_mul_i32 s70, s{S_W}, {8*640}
        v_add_u32 v{ARD}, s70, v{ARD}
        v_mul_u32_u24 v{AST}, 5120, v{AST}
        v_lshl_add_u32 v{AST}, v{AST+1}, 4, v{AST}
        s_lshl_b32 s70, s{S_KT}, 2
        s_add_u32 s70, s70, s{S_W}
        s_mul_i32 s70, s70, {8*5120}
        s_mul_i32 s71, s{S_CY}, 640
        s_add_u32 s70, s70, s71
        s_add_u32 s70, s70, 2560
        """)
        SK = 168
        for ct in range(5):
            for k in range(2):
                x, dk, o = XD + 2 * ct + k, DK + 2 * ct + k, SK + 4 * ct + 2 * k
                a(f"""
                v_lshlrev_b32 v{o}, 16, v{x}
                v_and_b32 v{o+1}, 0xffff0000, v{x}
                v_lshlrev_b32 v190, 16, v{dk}
                v_and_b32 v191, 0xffff0000, v{dk}
                v_pk_mul_f32 {vr(o,2)}, {vr(o,2)}, v[190:191]
                v_cvt_pk_bf16_f32 v{o+1}, v{o}, v{o+1}
                v_lshlrev_b32 v{o}, 16, v{o+1}
                v_and_b32 v{o+1}, 0xffff0000, v{o+1}
                """)
        a("s_waitcnt lgkmcnt(0)\ns_barrier")
        for ct in range(3):
            for w in range(4):
                a(f"ds_read_b128 {vr(16*ct+4*w,4)}, v{ARD} offset:{20480*w+128*ct}")
        for ct in range(5):
            a(f"s_waitcnt lgkmcnt({8 if ct < 3 else 4*(4-ct)})")
            b, o = 16 * ct, SK + 4 * ct
            if ct + 3 < 5:
                for w in range(4):
                    a(f"ds_read_b128 {vr(16*(ct+3)+4*w,4)}, v{ARD} offset:{20480*w+128*(ct+3)}")
            for k in (0, 2):
                a(f"""
                v_pk_add_f32 {vr(b+k,2)}, {vr(b+k,2)}, {vr(b+4+k,2)}
                v_pk_add_f32 {vr(b+8+k,2)}, {vr(b+8+k,2)}, {vr(b+12+k,2)}
                v_pk_add_f32 {vr(o+k,2)}, {vr(o+k,2)}, {vr(b+k,2)}
                v_pk_add_f32 {vr(o+k,2)}, {vr(o+k,2)}, {vr(b+8+k,2)}
                """)
            a(f"buffer_store_dwordx4 {vr(o,4)}, v{AST}, {sr(RC,4)}, s70 offen offset:{128*ct}")
        a("s_barrier")
        self.stamp(10)

    def o_job(self):
        a = self.a
        S_RB, S_CG, S_G, S_SO = 62, 63, 64, 65
        WV = [200, 201, 202, 203, 204]
        AT = 205
        PRE, OF_, ACC, RING = 0, 100, 180, 216

        def base_row(u, jj):
            p, j = divmod(u, 5)
            return 40 * p + (20 * (j >> 1) + 4 * (j & 1) + 8 * jj if j < 4 else 20 * jj + 16)

        a(f"""
        s_lshr_b32 s{S_RB}, s{S_S}, 3
        s_lshl_b32 s70, s{S_X}, 2
        s_add_u32 s{S_RB}, s{S_RB}, s70
        s_and_b32 s{S_CG}, s{S_S}, 7
        """)
        self.srd(RA, P_WO, W_BYTES)
        self.w160_lanes(WV)

        def group_loop(first, last, lds0, tag):
            a(f"""
            s_add_u32 s{S_G}, s{S_W}, {first}
            L_o_{tag}:
            s_mul_i32 s{S_SO}, s{S_G}, {32*1280}
            s_mul_i32 s70, s{S_CG}, 160
            s_add_u32 s{S_SO}, s{S_SO}, s70
            s_mul_i32 s71, s{S_G}, 5120
            s_sub_u32 s71, s71, {first*5120 - lds0}
            s_mov_b32 m0, s71
            s_add_u32 s{S_G}, s{S_G}, 4
            """)
            for i in range(4):
                self.dma(WV[i], RA, f"s{S_SO}", 1024 * i)
            a("s_add_u32 m0, s71, 4096")
            a(f"s_cmp_lt_u32 s{S_G}, {last}")
            self.dma(WV[4], RA, f"s{S_SO}")
            a(f"s_cbranch_scc1 L_o_{tag}")

        group_loop(0, 15, 0, "a")
        a(f"""
        v_lshrrev_b32 v1, 4, v{LANE}
        v_lshlrev_b32 v1, 3, v1
        v_bfe_u32 v2, v{LANE}, 2, 2
        v_and_b32 v3, 3, v{LANE}
        v_mul_u32_u24 v2, 160, v2
        v_lshl_add_u32 v2, v3, 3, v2
        s_movk_i32 s71, 160
        """)
        for s5 in range(5):
            for jj in range(2):
                lit = sum(base_row(4 * s5 + g, jj) << (8 * g) for g in range(4))
                a(f"s_mov_b32 s70, {lit:#x}\nv_bfe_u32 v3, s70, v1, 8\nv_mad_u32_u24 v{AT+2*s5+jj}, v3, s71, v2")
        POFF = [0, 25600, 51200, 0]

        def wread(dst, s, nt):
            for jj in range(2):
                a(f"ds_read_b64_tr_b16 {vr(dst+2*jj,2)}, v{AT+2*(s%5)+jj} offset:{POFF[s//5]+32*nt}")

        a("s_waitcnt vmcnt(0)\ns_barrier")
        for s in range(5):
            for nt in range(5):
                wread(PRE + 20 * s + 4 * nt, s, nt)
            a("s_waitcnt lgkmcnt(0)")
        a("s_barrier")
        group_loop(15, 20, 0, "b")
        AS = 215
        a(f"""
        v_lshrrev_b32 v{AS}, 4, v{LANE}
        v_and_b32 v{ACC}, 15, v{LANE}
        v_mul_u32_u24 v{AS}, {4*5120}, v{AS}
        v_lshl_add_u32 v{AS}, v{ACC}, 2, v{AS}
        s_lshl_b32 s72, s{S_RB}, 2
        s_add_u32 s72, s72, s{S_W}
        s_mul_i32 s73, s72, {16*5120}
        s_mul_i32 s70, s{S_CG}, 320
        s_add_u32 s73, s73, s70
        s_mul_i32 s72, s72, 20480
        s_add_u32 s72, s72, {WS_O}
        s_waitcnt vmcnt(0)
        """)
        self.stamp(11)
        a(f"""
        s_cmp_lg_u32 s{S_W}, 0
        s_cbranch_scc1 L_o_go
        s_lshl_b32 s70, s{S_RB}, 7
        s_add_u32 s70, s70, {WS_OF}
        """)
        self.poll_eq(RW, "s70", 8, sleep=2, va=ACC, vd=ACC + 1)
        a("L_o_go:\ns_setprio 3\ns_barrier")
        self.stamp(12)
        for n in range(20):
            if n % 4 == 0 and n:
                a("s_add_u32 s72, s72, 4096")
            o = f" offset:{1024*(n%4)}" if n % 4 else ""
            a(f"buffer_load_dwordx4 {vr(OF_+4*n,4)}, v{L16}, {sr(RW,4)}, s72 offen{o} sc1")
        frags = [(s, nt) for s in range(5, 20) for nt in range(5)]
        DEPTH = 7
        slot = lambda i: RING + 4 * (i % 8)
        for i in range(DEPTH):
            wread(slot(i), *frags[i])
        for s in range(20):
            a(f"s_waitcnt vmcnt({19-s})")
            for nt in range(5):
                cin = "0" if s == 0 else vr(ACC + 4 * nt, 4)
                if s < 5:
                    b = PRE + 20 * s + 4 * nt
                else:
                    i = (s - 5) * 5 + nt
                    b = slot(i)
                    left = min(DEPTH - 1, len(frags) - 1 - i)
                    a(f"s_waitcnt lgkmcnt({2*left})")
                a(f"v_mfma_f32_16x16x32_bf16 {vr(ACC+4*nt,4)}, {vr(OF_+4*s,4)}, {vr(b,4)}, {cin}")
                if s >= 5 and i + DEPTH < len(frags):
                    wread(slot(i + DEPTH), *frags[i + DEPTH])
        self.stamp(13)
        for r in range(4):
            if r:
                a("s_add_u32 s73, s73, 5120")
            for nt in range(5):
                a(f"buffer_store_dword v{ACC+4*nt+r}, v{AS}, {sr(RC,4)}, s73 offen offset:{64*nt}")
        if self.diag:
            a("s_waitcnt vmcnt(0)")

    def ssm_role(self):
        self.role = "ssm"
        self.lanes()
        self.after_kernarg()
        self.srd(RW, P_WS, WS_END)
        self.srd(RD, P_DBG, 256)
        self.kv_job()
        self.u_job()
        self.y_job()
        self.o_job()
        self.finish_wave()

    def att_role(self):
        a = self.a
        self.role = "att"
        S = [0, 16, 32, 48]
        O, NEG = [64, 80], [96, 112]
        Q1, Q2 = [128, 132], [136, 140]
        K1, K2, V = [144, 148], [152, 154], [156, 164, 172]
        IDX, AK, AK2, AV, QN = 180, 181, 182, 183, 184
        WV, TRQ, AX, AW = [186, 187, 188], 189, 190, 194
        FB = 196
        S_RB, S_HG, S_XO, S_WO_, S_C, S_SL, S_RD, S_MX, S_MW = 62, 63, 64, 65, 66, 67, 68, 69, 70
        SLOT, KMAX = 18432, 73728
        a("L_att:")
        self.lanes()
        self.w160_lanes(WV)
        a(f"""
        s_lshr_b32 s{S_RB}, s{S_S}, 3
        s_lshl_b32 s{S_T}, s{S_X}, 2
        s_add_u32 s{S_RB}, s{S_RB}, s{S_T}
        s_and_b32 s{S_HG}, s{S_S}, 7
        s_lshl_b32 s{S_T}, s{S_RB}, 2
        s_add_u32 s{S_T}, s{S_T}, s{S_W}
        s_mul_i32 s{S_XO}, s{S_T}, {16*1280}
        s_mul_i32 s{S_WO_}, s{S_W}, {16*1280}
        s_mul_i32 s{S_T}, s{S_HG}, 160
        s_add_u32 s{S_WO_}, s{S_WO_}, s{S_T}
        s_lshl_b32 s{S_MX}, s{S_W}, 11
        s_mul_i32 s{S_MW}, s{S_W}, 2560
        s_add_u32 s{S_MW}, s{S_MW}, 8192
        s_mov_b32 s{S_SL}, 0
        s_mov_b32 s{S_C}, 0
        """)
        self.after_kernarg()
        self.srd(RA, P_AX, X_BYTES)
        self.srd(RB, P_WQ, W_BYTES)

        def issue():
            a(f"s_add_u32 m0, s{S_SL}, s{S_MX}\ns_add_u32 s{S_C}, s{S_C}, 1")
            self.dma(SW0, RA, f"s{S_XO}")
            self.dma(SW1, RA, f"s{S_XO}", 1024)
            a(f"s_add_u32 m0, s{S_SL}, s{S_MW}\ns_add_u32 s{S_XO}, s{S_XO}, 128")
            self.dma(WV[0], RB, f"s{S_WO_}")
            self.dma(WV[1], RB, f"s{S_WO_}", 1024)
            a("s_mov_b32 exec_hi, 0")
            self.dma(WV[2], RB, f"s{S_WO_}", 2048)
            a(f"""
            s_mov_b32 exec_hi, -1
            s_add_u32 s{S_WO_}, s{S_WO_}, {64*1280}
            s_add_u32 s{S_SL}, s{S_SL}, {SLOT}
            """)

        a("L_q_pre:")
        issue()
        a(f"s_cmp_lt_u32 s{S_C}, 3\ns_cbranch_scc1 L_q_pre")
        self.srd(RW, P_WS, WS_END)
        self.srd(RD, P_DBG, 256)
        self.srd(RC, P_WS, KV_BYTES, WS_KV)
        self.frag_lanes()
        self.tr_lanes(TRQ, 160)
        a(f"""
        s_and_b32 s71, s{S_W}, 1
        s_lshl_b32 s71, s71, 12
        s_lshr_b32 s72, s{S_W}, 1
        s_mul_i32 s72, s72, 80
        s_add_u32 s72, s72, 8192
        s_mov_b32 s{S_RD}, 0
        v_mov_b32 v1, {KMAX}
        v_mov_b32 v2, 0
        ds_write_b32 v1, v2
        """)
        for s in range(4):
            a(f"v_add_u32 v{FR[s]}, s71, v{FR[s]}")
        a(f"v_add_u32 v{TRQ}, s72, v{TRQ}")
        for i in range(32):
            a(f"v_mov_b32 v{i}, 0")
        self.stamp(1)
        a("L_q_loop:")
        for s in range(4):
            a(f"v_add_u32 v{AX+s}, s{S_RD}, v{FR[s]}")
        a(f"""
        v_add_u32 v{AW}, s{S_RD}, v{TRQ}
        s_add_u32 s{S_RD}, s{S_RD}, {SLOT}
        s_cmp_eq_u32 s{S_RD}, {4*SLOT}
        s_cselect_b32 s{S_RD}, 0, s{S_RD}
        s_cmp_ge_u32 s{S_C}, 10
        s_cselect_b32 s{S_XO}, {FAR:#x}, s{S_XO}
        s_waitcnt vmcnt(10) lgkmcnt(0)
        s_barrier
        """)

        def qreads(s):
            b = FB + 12 * s
            a(f"ds_read_b128 {vr(b,4)}, v{AX+s}")
            for hd in range(2):
                for j in range(2):
                    a(f"ds_read_b64_tr_b16 {vr(b+4+4*hd+2*j,2)}, v{AW} offset:{(16*s+4*j)*160+40*hd}")

        qreads(0)
        qreads(1)
        qreads(2)
        issue()
        a(f"s_cmp_eq_u32 s{S_SL}, {4*SLOT}\ns_cselect_b32 s{S_SL}, 0, s{S_SL}")
        for s in range(4):
            a(f"s_waitcnt lgkmcnt({[10,10,5,0][s]})")
            b = FB + 12 * s
            for hd in range(2):
                a(f"v_mfma_f32_32x32x16_bf16 {vr(16*hd,16)}, {vr(b+4+4*hd,4)}, {vr(b,4)}, {vr(16*hd,16)}")
            if s == 0:
                qreads(3)
        a(f"s_cmp_lt_u32 s{S_C}, 13\ns_cbranch_scc1 L_q_loop")
        self.stamp(2)
        a(f"""
        s_cmp_lg_u32 s{S_W}, 0
        s_cbranch_scc1 L_kvw_go
        """)
        self.poll_eq(RD, "0", 1, va=40, vd=41)
        a(f"v_lshlrev_b32 v40, 7, v{LANE}")
        self.poll(40, RW, "0", 42, 2, lambda: a("v_and_b32 v44, v42, v43\nv_cmp_eq_u32 vcc, 0, v44"), sleep=1)
        a(f"""
        v_mov_b32 v40, {KMAX}
        ds_max_u32 v40, v42
        L_kvw_go:
        s_mul_i32 s71, s{S_W}, 3072
        s_lshl_b32 s{S_MX}, s{S_W}, 13
        s_add_u32 s{S_XO}, s{S_MX}, {2*5376}
        s_add_u32 m0, s71, {0x8000+21504}
        s_waitcnt vmcnt(0)
        s_barrier
        """)
        self.stamp(3)
        for i in range(3):
            self.dma(L16, RC, "s71", 1024 * i, sc1=True)
        for g in range(2):
            a(f"s_add_u32 m0, s{S_MX}, {4096*g}\ns_add_u32 s71, s{S_XO}, {4096*g}")
            for i in range(4):
                self.dma(L16, RC, "s71", 1024 * i, sc1=True)
        a(f"s_mov_b32 s72, {fbits(QSCALE)}\nv_cmp_lt_u32 vcc, 31, v{LANE}")
        for hd in range(2):
            b = 16 * hd
            for i in range(12):
                a(f"v_mul_f32 v{b+i}, s72, v{b+i}")
            a(f"v_cndmask_b32 v{b+8}, v{b+8}, v{b+10}, vcc\nv_cndmask_b32 v{b+9}, v{b+9}, v{b+11}, vcc")
            for i in range(4):
                a(f"v_cvt_pk_bf16_f32 v{Q1[hd]+i}, v{b+2*i}, v{b+2*i+1}")
            a(f"""
            v_cvt_pk_bf16_f32 v{Q2[hd]}, v{b+8}, v{b+9}
            v_mov_b32 v{Q2[hd]+1}, 0
            v_mov_b32 v{Q2[hd]+2}, 0
            v_mov_b32 v{Q2[hd]+3}, v{Q2[hd]}
            v_mul_f32 v{QN+hd}, v{b}, v{b}
            """)
            for i in range(1, 10):
                a(f"v_fmac_f32 v{QN+hd}, v{b+i}, v{b+i}")
        a(f"""
        v_permlane32_swap_b32 v{QN}, v{QN+1}
        v_add_f32 v{QN}, v{QN}, v{QN+1}
        v_mov_b32 v{IDX}, 0xdddddddd
        v_add_u32 v{AK}, 0x8000, v{L16}
        v_lshlrev_b32 v{AK2}, 2, v{LANE}
        v_add_u32 v{AK2}, 0x8000, v{AK2}
        v_and_b32 v1, 31, v{LANE}
        v_lshrrev_b32 v2, 5, v{LANE}
        v_min_u32 v1, 20, v1
        v_mul_u32_u24 v2, 352, v2
        v_lshl_add_u32 v{AV}, v1, 4, v2
        v_add_u32 v{AV}, 0x8000, v{AV}
        v_mov_b32 v1, {KMAX}
        """)
        for i in list(range(48, 128)) + list(range(V[1], V[1] + 8)):
            a(f"v_mov_b32 v{i}, 0")

        def rdK1(pos):
            return f"ds_read_b128 {vr(K1[pos&1],4)}, v{AK} offset:{(pos>>1)*5376+(pos&1)*1024}"

        def rdK2(pos):
            p = pos >> 1
            return f"ds_read2st64_b32 {vr(K2[p&1],2)}, v{AK2} offset0:{21*p+8} offset1:{21*p+9}"

        def rdV(pos, op):
            return f"ds_read_b128 {vr(V[pos%3]+4*op,4)}, v{AV} offset:{(pos>>1)*5376+2560+(pos&1)*1408+704*op}"

        def qk(pos, q, d):
            return (f"v_mfma_f32_32x32x16_bf16 {vr(d,16)}, {vr(K1[pos&1],4)}, {vr(Q1[q],4)}, {vr(NEG[q],16)}",
                    f"v_mfma_f32_32x32x8_bf16 {vr(d,16)}, {vr(K2[(pos>>1)&1],2)}, {vr(Q2[q]+2*(pos&1),2)}, {vr(d,16)}")

        def pv(pos, q, p):
            return tuple(f"v_smfmac_f32_32x32x32_bf16 {vr(O[q],16)}, {vr(V[pos%3]+4*op,4)}, {vr(p+8*op,8)}, v{IDX}" for op in range(2))

        a(f"s_waitcnt vmcnt(8) lgkmcnt(0)\ns_barrier\nds_read_b32 v2, v1")
        for ins in (rdK1(8), rdK2(8), rdK1(9), rdV(8, 0), rdV(8, 1), rdV(9, 0), rdV(9, 1)):
            a(ins)
        a(f"""
        s_setprio 2
        s_mov_b32 s{S_C}, 0
        s_mov_b32 s72, {fbits(SAFE_BOUND**2)}
        s_waitcnt lgkmcnt(7)
        v_mul_f32 v2, v2, v{QN}
        v_cmp_nle_f32 vcc, v2, s72
        s_cbranch_vccnz L_rowmax
        L_rowmax_done:
        s_waitcnt lgkmcnt(0)
        """)
        self.stamp(4)
        for q in range(2):
            for ins in qk(8, q, S[q]):
                a(ins)
        a("s_nop 11\ns_branch L_a_p10")

        SL = self.o.get("slots", (0, 6, 3, 10))

        def phase(pos, q, fill, lo=0, hi=17, do_qk=True):
            t = 2 * (pos - 2) + q
            x = S[t % 4]
            ms = list(qk(pos - 1, q, S[(t + 2) % 4])) + list(pv(pos - 2 if q else pos - 3, 1 - q, S[(t - 1) % 4]))
            for e in range(17):
                for i, sl in enumerate(SL):
                    if sl == e and lo <= e < hi and (do_qk or i >= 2) and not (lo and e == lo):
                        a(ms[i])
                        for ins in fill.get(i, []):
                            a(ins)
                if e < 16 and lo <= e < hi - 1:
                    a(f"v_exp_f32 v{x+e}, v{x+e}")

        cut = SL[3]
        a(f"""
        .p2align 6
        L_a_loop:
        s_waitcnt vmcnt(0) lgkmcnt(0)
        s_barrier
        """)
        phase(11 + 12, 1, {}, lo=cut)
        for r in (AK, AK2, AV):
            a(f"v_xor_b32 v{r}, 0x8000, v{r}")
        for pos in range(12):
            p = pos + 12
            if pos == 10:
                a("L_a_p10:")
            fa = {0: [rdK1(pos)], 2: [rdK2(pos)] if pos % 2 == 0 else [], 3: []}
            fb = {0: [rdV(pos, 0)], 2: [rdV(pos, 1)], 3: ["s_waitcnt lgkmcnt(2)"]}
            if 1 <= pos <= 8:
                i = pos - 1
                o = f" offset:{1024*(i%4)}" if i % 4 else ""
                fa[3] = [f"buffer_load_dwordx4 v{L16}, {sr(RC,4)}, s71 offen{o} sc1 lds"]
            if pos == 0:
                fa[3] = [f"s_xor_b32 s{S_MX}, s{S_MX}, 0x8000", f"s_add_u32 s{S_XO}, s{S_XO}, {6*5376}"]
                fb[3] += [f"s_mov_b32 m0, s{S_MX}"]
            if pos == 1:
                fa[2] = [f"s_mov_b32 s71, s{S_XO}"]
            if pos == 4:
                fb[3] += [f"s_add_u32 m0, s{S_MX}, 4096"]
            if pos == 5:
                fa[2] = [f"s_add_u32 s71, s{S_XO}, 4096"]
            if pos == 11:
                fa[2] = [f"s_add_u32 s{S_C}, s{S_C}, 1", f"s_cmp_lt_u32 s{S_C}, 6"]
                fb[3] = ["s_cbranch_scc1 L_a_loop"]
            phase(p, 0, fa)
            phase(p, 1, fb, hi=cut + 1 if pos == 11 else 17)
        a("s_waitcnt lgkmcnt(0)")
        phase(11 + 12, 1, {}, lo=cut)
        phase(24, 0, {})
        phase(24, 1, {})
        phase(25, 0, {}, do_qk=False)
        phase(25, 1, {}, do_qk=False)
        for ins in pv(23, 1, S[(2 * 23 + 1) % 4]):
            a(ins)
        self.stamp(5)
        a(f"""
        v_and_b32 v40, 15, v{LANE}
        v_bfe_u32 v41, v{LANE}, 4, 1
        v_lshrrev_b32 v42, 5, v{LANE}
        v_mul_u32_u24 v41, 20480, v41
        v_lshl_add_u32 v40, v40, 4, v41
        v_lshl_add_u32 v40, v42, 8, v40
        s_and_b32 s71, s{S_W}, 1
        s_lshl_b32 s72, s{S_RB}, 1
        s_add_u32 s71, s71, s72
        s_mul_i32 s71, s71, {2*20480}
        s_lshr_b32 s72, s{S_W}, 1
        s_lshl_b32 s73, s{S_HG}, 1
        s_add_u32 s72, s72, s73
        s_mul_i32 s72, s72, 1280
        s_add_u32 s71, s71, s72
        s_add_u32 s71, s71, {WS_O}
        """)
        for q in range(2):
            o = O[q]
            a(f"v_rcp_f32 v{o+12}, v{o+12}")
            for i in range(0, 12, 2):
                a(f"v_pk_mul_f32 {vr(o+i,2)}, {vr(o+i,2)}, {vr(o+12,2)} op_sel_hi:[1,0]")
            for i in range(4):
                a(f"v_cvt_pk_bf16_f32 v{4*q+i}, v{o+2*i}, v{o+2*i+1}")
            for i in range(2):
                a(f"v_cvt_pk_bf16_f32 v{8+2*q+i}, v{o+8+2*i}, v{o+9+2*i}")
            a(f"buffer_store_dwordx4 {vr(4*q,4)}, v40, {sr(RW,4)}, s71 offen offset:{512*q} sc1")
        a(f"""
        s_mov_b32 exec_hi, 0
        buffer_store_dwordx4 v[8:11], v40, {sr(RW,4)}, s71 offen offset:1024 sc1
        s_mov_b32 exec_hi, -1
        s_lshl_b32 s71, s{S_RB}, 7
        s_add_u32 s71, s71, {WS_OF}
        s_waitcnt vmcnt(0)
        s_barrier
        s_cmp_lg_u32 s{S_W}, 0
        s_cbranch_scc1 L_a_end
        """)
        self.signal_add(RW, "s71", va=20, vd=21)
        a("L_a_end:")
        self.finish_wave()

        T1, T2, M = 200, 208, 212
        a(f"""
        L_rowmax:
        v_lshlrev_b32 v214, 2, v{LANE}
        v_mov_b32 v{M}, 0xff800000
        v_mov_b32 v{M+1}, 0xff800000
        s_mov_b32 s73, 0
        L_rowmax_loop:
        buffer_load_dwordx4 {vr(T1,4)}, v{L16}, {sr(RC,4)}, s73 offen sc1
        buffer_load_dwordx4 {vr(T1+4,4)}, v{L16}, {sr(RC,4)}, s73 offen offset:1024 sc1
        buffer_load_dword v{T2}, v214, {sr(RC,4)}, s73 offen offset:2048 sc1
        buffer_load_dword v{T2+1}, v214, {sr(RC,4)}, s73 offen offset:2304 sc1
        s_add_u32 s73, s73, 5376
        s_waitcnt vmcnt(0)
        """)
        for t in range(2):
            for q in range(2):
                a(f"v_mfma_f32_32x32x16_bf16 {vr(16*q,16)}, {vr(T1+4*t,4)}, {vr(Q1[q],4)}, 0")
                a(f"v_mfma_f32_32x32x8_bf16 {vr(16*q,16)}, {vr(T2,2)}, {vr(Q2[q]+2*t,2)}, {vr(16*q,16)}")
            for q in range(2):
                for i in range(0, 16, 2):
                    a(f"v_max3_f32 v{M+q}, v{16*q+i}, v{16*q+i+1}, v{M+q}")
        a(f"s_cmp_lt_u32 s73, {KV_BYTES}\ns_cbranch_scc1 L_rowmax_loop")
        for q in range(2):
            a(f"""
            v_mov_b32 v214, v{M+q}
            v_permlane32_swap_b32 v{M+q}, v214
            v_max_f32 v{M+q}, v{M+q}, v214
            """)
            for i in range(16):
                a(f"v_sub_f32 v{NEG[q]+i}, 0, v{M+q}")
        a("s_nop 1\ns_branch L_rowmax_done")

    def build(self):
        head = open(f"cdna_kernels/{NAME}.s.ref").read().split("; Override launch geometry")[0]
        self.entry()
        self.ssm_role()
        self.att_role()
        self.a("L_exit:\ns_endpgm")
        body = self.a.finish()
        return (head + "; @launch grid=(512,1,1) block=(256,1,1) lds=81920\n"
                + f""".amdgcn_target "amdgcn-amd-amdhsa--gfx950"
.text
.globl {NAME}_kernel
.p2align 8
.type {NAME}_kernel,@function
{NAME}_kernel:
""" + body + f""".section .rodata,"a"
.p2align 6
.amdhsa_kernel {NAME}_kernel
  .amdhsa_next_free_vgpr 256
  .amdhsa_next_free_sgpr 102
  .amdhsa_accum_offset 256
  .amdhsa_group_segment_fixed_size 0
  .amdhsa_kernarg_size 136
  .amdhsa_user_sgpr_count 2
  .amdhsa_user_sgpr_kernarg_segment_ptr 1
  .amdhsa_system_sgpr_workgroup_id_x 1
.end_amdhsa_kernel
""")


if __name__ == "__main__":
    out = sys.argv[1] if len(sys.argv) > 1 else f"cdna_kernels/{NAME}.s"
    opts = {}
    for x in sys.argv[2:]:
        if "=" in x:
            k, v = x.split("=", 1)
            opts[k] = eval(v)
    g = Gen(diag="diag" in sys.argv[2:], opts=opts)
    open(out, "w").write(g.build())
    print("written", out, "pads", g.a.pads)
```
